```python
import torch

def _softmax(x, axis=-1):
    return torch.softmax(x, dim=axis)
def _gelu(x):
    return torch.nn.functional.gelu(x, approximate="tanh")
def _silu(x):
    return torch.nn.functional.silu(x)
def _sigmoid(x):
    return torch.sigmoid(x)
def _layernorm(x, axis=-1, eps=1e-5):
    m = x.mean(dim=axis, keepdim=True)
    v = x.var(dim=axis, keepdim=True, unbiased=False)
    return (x - m) / torch.sqrt(v + eps)
def _scatter_add(tgt, idx, src, axis=0):
    return tgt.clone().index_add_(axis, idx, src)
def _segment_sum(src, seg, n):
    out = torch.zeros((n,) + src.shape[1:], dtype=src.dtype)
    return out.index_add_(0, seg, src)
def _pad(x, pw):
    flat = tuple(v for pair in reversed(pw) for v in pair)
    return torch.nn.functional.pad(x, flat)

kernel_name = 'parallel_sum__ssm_conv_h3__moe_arch_mod__prompt'

def setup_inputs():

    _w = (lambda a: (lambda t: t.to(torch.bfloat16) if t.is_floating_point() else t)(torch.as_tensor(a)))
    def _A_setup():
        B, S, D = 1, 2048, 640
        ks = 4
        return {
            "q": _w((lambda *s: torch.randn(*s, dtype=torch.bfloat16) * 0.05)(B, S, D)),
            "k": _w((lambda *s: torch.randn(*s, dtype=torch.bfloat16) * 0.4)(B, S, D)),
            "v": _w((lambda *s: torch.randn(*s, dtype=torch.bfloat16) * 0.4)(B, S, D)),
            "shift_k": _w((lambda *s: torch.randn(*s, dtype=torch.bfloat16) * 0.4)(D, ks) * 0.5),
            "ssm_k": _w((lambda *s: torch.randn(*s, dtype=torch.bfloat16) * 1.6)(D, S) * (1.0 / S ** 0.5)),
            "ssm_D": _w((lambda *s: torch.randn(*s, dtype=torch.bfloat16) * 0.4)(D)),
        }
    _A_in = _A_setup()

    def _B_setup():
        B, S, D, F, C = 1, 2048, 640, 1728, 2
        return {
            "x": _w((lambda *s: torch.randn(*s, dtype=torch.bfloat16) * 0.05)(B, S, D)),
            "w_r": _w((lambda *s: torch.randn(*s, dtype=torch.bfloat16) * 0.05)(D)),
            "w_gate": _w((lambda *s: torch.randn(*s, dtype=torch.bfloat16) * 0.05)(D, F)),
            "w_up": _w((lambda *s: torch.randn(*s, dtype=torch.bfloat16) * 0.05)(D, F)),
            "w_down": _w((lambda *s: torch.randn(*s, dtype=torch.bfloat16) * 0.05)(F, D)),
        }
    _B_in = _B_setup()

    return {
        "A_q": _A_in["q"],
        "A_k": _A_in["k"],
        "A_v": _A_in["v"],
        "A_shift_k": _A_in["shift_k"],
        "A_ssm_k": _A_in["ssm_k"],
        "A_ssm_D": _A_in["ssm_D"],
        "B_x": _B_in["x"],
        "B_w_r": _B_in["w_r"],
        "B_w_gate": _B_in["w_gate"],
        "B_w_up": _B_in["w_up"],
        "B_w_down": _B_in["w_down"],
    }

def reference(A_q, A_k, A_v, A_shift_k, A_ssm_k, A_ssm_D, B_x, B_w_r, B_w_gate, B_w_up, B_w_down):
    def _A_ref(q, k, v, shift_k, ssm_k, ssm_D):
        B, S, D = q.shape
        ks = shift_k.shape[-1]
        k_pad = _pad(k, ((0, 0), (ks - 1, 0), (0, 0)))
        k_shift = torch.zeros_like(k)
        for t in range(ks):
            k_shift = k_shift + k_pad[:, t:t + S, :] * shift_k[:, ks - 1 - t][None, None, :]
        kv = k_shift * v
        L = 2 * S
        kv_pad = _pad(kv, ((0, 0), (0, S), (0, 0)))
        kf_pad = _pad(ssm_k, ((0, 0), (0, S)))
        kv_f = (lambda x, axes=(-2,-1): torch.fft.rfft2(x.float(), dim=axes))(kv_pad[:, None, :, :], axes=(1, 2))
        kf_f = (lambda x, axes=(-2,-1): torch.fft.rfft2(x.float(), dim=axes))(kf_pad[:, None, :], axes=(1, 2))
        kf_f = (lambda x, *d: x.permute(*d))(kf_f, 1, 2, 0)
        y_f = kv_f * kf_f[None, :, :, :]
        y = (lambda x, s, axes=(-2,-1): torch.fft.irfft2(x, s=s, dim=axes).to(torch.bfloat16))(y_f, (1, L), axes=(1, 2))[:, 0, :S, :]
        y = y + kv * ssm_D[None, None, :]
        return q * y

    def _B_ref(x, w_r, w_gate, w_up, w_down):
        B, S, D = x.shape
        C = 2
        r = x @ w_r
        idx = torch.argsort(-r, axis=-1)[:, :C]
        idx_e = (lambda x, n, axis: torch.repeat_interleave(x, n, dim=axis))(idx.reshape(B, C, 1), D, axis=2)
        x_sel = (lambda x, i, axis: torch.take_along_dim(x, i, dim=axis))(x, idx_e, axis=1)
        g = _silu(x_sel @ w_gate)
        u = x_sel @ w_up
        y = (g * u) @ w_down
        r_sel = _sigmoid((lambda x, i, axis: torch.take_along_dim(x, i, dim=axis))(r, idx, axis=1))
        y = y * r_sel.reshape(B, C, 1)
        b_off = (torch.arange(B) * S).reshape(B, 1)
        flat_idx = (idx + b_off).reshape(B * C)
        zero = (x * 0.0).reshape(B * S, D)
        upd = _scatter_add(zero, flat_idx, y.reshape(B * C, D), axis=0)
        return x + upd.reshape(B, S, D)

    x = A_q
    xn = _layernorm(x, axis=-1)
    return x + _A_ref(xn, A_k, A_v, A_shift_k, A_ssm_k, A_ssm_D) + _B_ref(xn, B_w_r, B_w_gate, B_w_up, B_w_down)
```

```python
class Regs:
    def __init__(self, prefix, start, limit):
        self.p = prefix; self.n = start; self.limit = limit; self.hi = start
    def alloc(self, cnt=1, align=1):
        self.n = (self.n + align - 1) // align * align
        r = self.n; self.n += cnt
        assert self.n <= self.limit, (self.p, self.n, self.limit)
        self.hi = max(self.hi, self.n)
        return r
    def mark(self): return self.n
    def reset(self, m): self.n = m

def v(i, n=1): return f"v{i}" if n == 1 else f"v[{i}:{i+n-1}]"
def s(i, n=1): return f"s{i}" if n == 1 else f"s[{i}:{i+n-1}]"

class Asm:
    def __init__(self):
        self.lines = []
        self.uid = 0
    def __call__(self, txt):
        for l in txt.strip("\n").split("\n"):
            l = l.strip()
            if not l: continue
            if l.endswith(":") or l.startswith(".") or l.startswith(";"):
                self.lines.append(l)
            else:
                self.lines.append("    " + l)
    def label(self, base):
        self.uid += 1
        return f"L_{base}_{self.uid}"
    def text(self): return "\n".join(self.lines) + "\n"
    def srd(self, d, p, nbytes, add=None):
        if add is None:
            self(f"s_mov_b32 {s(d)}, {s(p)}\ns_mov_b32 {s(d+1)}, {s(p+1)}")
        else:
            self(f"s_add_u32 {s(d)}, {s(p)}, {add}\ns_addc_u32 {s(d+1)}, {s(p+1)}, 0")
        self(f"s_mov_b32 {s(d+2)}, {nbytes}\ns_mov_b32 {s(d+3)}, 0x20000")
    def unpack(self, lo, hi, src):
        self(f"v_lshlrev_b32 {v(lo)}, 16, {v(src)}\nv_and_b32 {v(hi)}, 0xffff0000, {v(src)}")
    def wave_sum(self, regs, op="v_add_f32"):
        steps = ["row_shr:1 row_mask:0xf bank_mask:0xf bound_ctrl:0",
                 "row_shr:2 row_mask:0xf bank_mask:0xf bound_ctrl:0",
                 "row_shr:4 row_mask:0xf bank_mask:0xf bound_ctrl:0",
                 "row_shr:8 row_mask:0xf bank_mask:0xf bound_ctrl:0",
                 "row_bcast:15 row_mask:0xa bank_mask:0xf",
                 "row_bcast:31 row_mask:0xc bank_mask:0xf"]
        pad = max(0, 2 - (len(regs) - 1))
        self("s_nop 1")
        for st in steps:
            for r in regs:
                self(f"{op}_dpp {v(r)}, {v(r)}, {v(r)} {st}")
            if pad: self(f"s_nop {pad-1}")

def kernel_desc(name, vgpr, sgpr):
    acc = (vgpr + 3) // 4 * 4
    return f""".amdhsa_kernel {name}
  .amdhsa_next_free_vgpr {vgpr}
  .amdhsa_next_free_sgpr {sgpr}
  .amdhsa_accum_offset {acc}
  .amdhsa_group_segment_fixed_size 0
  .amdhsa_kernarg_size 112
  .amdhsa_user_sgpr_count 2
  .amdhsa_user_sgpr_kernarg_segment_ptr 1
  .amdhsa_system_sgpr_workgroup_id_x 1
  .amdhsa_float_denorm_mode_32 3
.end_amdhsa_kernel
"""
```

```python
import sys
from asmlib import *

NAME = "parallel_sum__ssm_conv_h3__moe_arch_mod__prompt"
QSZ = 2048 * 1280
U_OFF = 0
Y_OFF = QSZ
ST_OFF = 2 * QSZ
KEY_OFF = ST_OFF + 16384
TOP_OFF = KEY_OFF + 8192
PART_OFF = TOP_OFF + 256
WS_USED = PART_OFF + 27 * 5120
INV640 = "0x3acccccd"
EPS = "0x3727c5ac"
LOG2E = "0x3fb8aa3b"

HCOPY = 4160
HCH = 4 * HCOPY
UB = 3 * HCH
RB = UB + 15360
LDS2 = RB + 3 * 8192

def prologue(a, name):
    a(f".globl {name}\n.p2align 8\n.type {name},@function\n{name}:")

def ln_stats_tail(a, vmean, vvar, vt):
    a(f"""
    v_cvt_pk_bf16_f32 {v(vt)}, {v(vmean)}, {v(vvar)}
    v_lshlrev_b32 {v(vmean)}, 16, {v(vt)}
    v_and_b32 {v(vvar)}, 0xffff0000, {v(vt)}
    v_add_f32 {v(vvar)}, {EPS}, {v(vvar)}
    v_cvt_pk_bf16_f32 {v(vt)}, {v(vvar)}, {v(vvar)}
    v_lshlrev_b32 {v(vvar)}, 16, {v(vt)}
    v_sqrt_f32 {v(vvar)}, {v(vvar)}
    s_nop 0
    v_cvt_pk_bf16_f32 {v(vt)}, {v(vvar)}, {v(vvar)}
    v_lshlrev_b32 {v(vvar)}, 16, {v(vt)}
    v_rcp_f32 {v(vvar)}, {v(vvar)}
    s_nop 0
    """)

def gen_k1(a):
    name = "k1_kernel"
    prologue(a, name)
    V = Regs("v", 1, 128)
    done = a.label("k1done")
    a(f"""
    s_cmp_ge_u32 s2, 256
    s_cbranch_scc1 {done}
    s_load_dwordx4 s[4:7], s[0:1], 0
    s_load_dwordx4 s[8:11], s[0:1], 16
    s_load_dwordx2 s[12:13], s[0:1], 56
    s_load_dwordx2 s[14:15], s[0:1], 104
    v_lshrrev_b32 v1, 6, v0
    s_mul_i32 s3, s2, 10240
    v_readfirstlane_b32 s40, v1
    s_movk_i32 s41, 5120
    """)
    V.alloc(1)
    vlane = V.alloc(); voff = V.alloc(); voffh = V.alloc(); vsk = V.alloc(); vq = V.alloc(); vw = V.alloc()
    a(f"""
    v_and_b32 {v(vlane)}, 63, v0
    v_lshl_add_u32 {v(voff)}, v0, 2, s3
    v_subrev_u32 {v(voffh)}, 3840, {v(voff)}
    v_lshlrev_b32 {v(vsk)}, 4, v0
    s_mul_i32 s42, s40, 1280
    s_add_u32 s42, s42, s3
    v_lshlrev_b32 {v(vw)}, 2, {v(vlane)}
    v_add_u32 {v(vq)}, s42, {v(vw)}
    s_waitcnt lgkmcnt(0)
    """)
    SQ, SK, SV, SS, SW, SWS = 16, 20, 24, 28, 32, 36
    a.srd(SQ, 4, QSZ); a.srd(SK, 6, QSZ); a.srd(SV, 8, QSZ); a.srd(SS, 10, 640 * 8); a.srd(SW, 12, 1280); a.srd(SWS, 14, WS_USED)
    X = V.alloc(5); W = V.alloc(5)
    KR = V.alloc(11); VR = V.alloc(8); SKR = V.alloc(4, 2)
    noU = a.label("noU1")
    a(f"s_cmp_ge_u32 s40, 5\ns_cbranch_scc1 {noU}")
    for r in range(3):
        a(f"buffer_load_dword {v(KR+r)}, {v(voffh)}, {s(SK,4)}, 0 offen offset:{1280*r}")
    for r in range(8):
        so = "0" if r < 4 else "s41"
        a(f"buffer_load_dword {v(KR+3+r)}, {v(voff)}, {s(SK,4)}, {so} offen offset:{1280*(r%4)}")
    a(f"buffer_load_dwordx4 {v(SKR,4)}, {v(vsk)}, {s(SS,4)}, 0 offen")
    for r in range(8):
        so = "0" if r < 4 else "s41"
        a(f"buffer_load_dword {v(VR+r)}, {v(voff)}, {s(SV,4)}, {so} offen offset:{1280*(r%4)}")
    a(f"{noU}:")
    for i in range(5):
        a(f"buffer_load_dword {v(X+i)}, {v(vq)}, {s(SQ,4)}, 0 offen offset:{256*i}")
    for i in range(5):
        a(f"buffer_load_dword {v(W+i)}, {v(vw)}, {s(SW,4)}, 0 offen offset:{256*i}")
    noU2 = a.label("noU2")
    a(f"s_cmp_ge_u32 s40, 5\ns_cbranch_scc1 {noU2}")
    m = V.mark()
    KF = V.alloc(22, 2); SF = V.alloc(8, 2); UF = V.alloc(16, 2); VF = V.alloc(2, 2); O = V.alloc(8, 2)
    a("s_waitcnt vmcnt(18)")
    for r in range(11):
        a.unpack(KF + 2*r, KF + 2*r + 1, KR + r)
    a(f"""
    v_lshlrev_b32 {v(SF+0)}, 16, {v(SKR+0)}
    v_lshlrev_b32 {v(SF+1)}, 16, {v(SKR+2)}
    v_and_b32 {v(SF+2)}, 0xffff0000, {v(SKR+0)}
    v_and_b32 {v(SF+3)}, 0xffff0000, {v(SKR+2)}
    v_lshlrev_b32 {v(SF+4)}, 16, {v(SKR+1)}
    v_lshlrev_b32 {v(SF+5)}, 16, {v(SKR+3)}
    v_and_b32 {v(SF+6)}, 0xffff0000, {v(SKR+1)}
    v_and_b32 {v(SF+7)}, 0xffff0000, {v(SKR+3)}
    """)
    for t in range(8):
        a(f"v_pk_mul_f32 {v(UF+2*t,2)}, {v(KF+2*t,2)}, {v(SF+6,2)}")
    for jj in (2, 1, 0):
        for t in range(8):
            a(f"v_pk_fma_f32 {v(UF+2*t,2)}, {v(KF+2*(t+3-jj),2)}, {v(SF+2*jj,2)}, {v(UF+2*t,2)}")
    a("s_waitcnt vmcnt(10)")
    for t in range(8):
        a.unpack(KF + 2*t, KF + 2*t + 1, VR + t)
    for t in range(8):
        a(f"v_pk_mul_f32 {v(UF+2*t,2)}, {v(UF+2*t,2)}, {v(KF+2*t,2)}")
    for c in range(2):
        for p in range(4):
            a(f"v_cvt_pk_bf16_f32 {v(O+4*c+p)}, {v(UF+2*(7-2*p)+c)}, {v(UF+2*(6-2*p)+c)}")
    a(f"""
    v_lshl_add_u32 {v(vsk)}, v0, 5, s3
    buffer_store_dwordx4 {v(O,4)}, {v(vsk)}, {s(SWS,4)}, 0 offen offset:{U_OFF}
    buffer_store_dwordx4 {v(O+4,4)}, {v(vsk)}, {s(SWS,4)}, 0 offen offset:{U_OFF+16}
    s_waitcnt vmcnt(2)
    """)
    a(f"{noU2}:")
    V.reset(m)
    F = V.alloc(10, 2); D = V.alloc(10, 2); acc = V.alloc(); vmean = V.alloc(); vvar = V.alloc(); vt = V.alloc(); ST = V.alloc(2, 2)
    a("s_waitcnt vmcnt(2)")
    a("s_cmp_lt_u32 s40, 5")
    skipw = a.label("skipw")
    a(f"s_cbranch_scc1 {skipw}\ns_waitcnt vmcnt(0)\n{skipw}:")
    for i in range(5):
        a.unpack(F + 2*i, F + 2*i + 1, X + i)
    a(f"v_pk_add_f32 {v(D,2)}, {v(F,2)}, {v(F+2,2)}")
    a(f"v_pk_add_f32 {v(D+2,2)}, {v(F+4,2)}, {v(F+6,2)}")
    a(f"v_pk_add_f32 {v(D,2)}, {v(D,2)}, {v(F+8,2)}")
    a(f"v_pk_add_f32 {v(D,2)}, {v(D,2)}, {v(D+2,2)}")
    a(f"v_add_f32 {v(acc)}, {v(D)}, {v(D+1)}")
    a.wave_sum([acc])
    a(f"v_readlane_b32 s44, {v(acc)}, 63\ns_nop 1\nv_mov_b32 {v(vmean)}, s44\nv_mul_f32 {v(vmean)}, {INV640}, {v(vmean)}")
    for i in range(10):
        a(f"v_sub_f32 {v(D+i)}, {v(F+i)}, {v(vmean)}")
    a(f"v_mul_f32 {v(acc)}, {v(D)}, {v(D)}")
    for i in range(1, 10):
        a(f"v_fmac_f32 {v(acc)}, {v(D+i)}, {v(D+i)}")
    a.wave_sum([acc])
    a(f"v_readlane_b32 s44, {v(acc)}, 63\ns_nop 1\nv_mov_b32 {v(vvar)}, s44\nv_mul_f32 {v(vvar)}, {INV640}, {v(vvar)}")
    ln_stats_tail(a, vmean, vvar, vt)
    for i in range(10):
        a(f"v_sub_f32 {v(D+i)}, {v(F+i)}, {v(vmean)}")
    for i in range(5):
        a(f"v_cvt_pk_bf16_f32 {v(X+i)}, {v(D+2*i)}, {v(D+2*i+1)}")
    for i in range(5):
        a.unpack(D + 2*i, D + 2*i + 1, X + i)
    for i in range(10):
        a(f"v_mul_f32 {v(D+i)}, {v(D+i)}, {v(vvar)}")
    for i in range(5):
        a(f"v_cvt_pk_bf16_f32 {v(X+i)}, {v(D+2*i)}, {v(D+2*i+1)}")
    for i in range(5):
        a.unpack(D + 2*i, D + 2*i + 1, X + i)
        a.unpack(F + 2*i, F + 2*i + 1, W + i)
    a(f"v_mul_f32 {v(acc)}, {v(D)}, {v(F)}")
    for i in range(1, 10):
        a(f"v_fmac_f32 {v(acc)}, {v(D+i)}, {v(F+i)}")
    a.wave_sum([acc])
    a(f"""
    v_cvt_pk_bf16_f32 {v(vt)}, {v(acc)}, {v(acc)}
    v_and_b32 {v(vt)}, 0xffff0000, {v(vt)}
    v_ashrrev_i32 {v(acc)}, 31, {v(vt)}
    v_or_b32 {v(acc)}, 0x80000000, {v(acc)}
    v_xor_b32 {v(vt)}, {v(vt)}, {v(acc)}
    v_and_b32 {v(vt)}, 0xffff0000, {v(vt)}
    s_lshl_b32 s45, s2, 3
    s_add_u32 s45, s45, s40
    s_sub_u32 s46, 0xffff, s45
    v_or_b32 {v(vt)}, s46, {v(vt)}
    v_mov_b32 {v(ST)}, {v(vmean)}
    v_mov_b32 {v(ST+1)}, {v(vvar)}
    s_lshl_b32 s46, s45, 3
    s_add_u32 s46, s46, {ST_OFF}
    s_lshl_b32 s47, s45, 2
    s_add_u32 s47, s47, {KEY_OFF}
    v_mov_b32 {v(vq)}, 0
    v_cmp_eq_u32 vcc, 63, {v(vlane)}
    s_and_saveexec_b64 s[48:49], vcc
    buffer_store_dwordx2 {v(ST,2)}, {v(vq)}, {s(SWS,4)}, s46 offen
    buffer_store_dword {v(vt)}, {v(vq)}, {s(SWS,4)}, s47 offen
    {done}:
    s_endpgm
    """)
    return name, V.hi, 56

def mfma_order():
    o = []
    for n in range(8):
        for i in range(n + 1):
            for (x, y) in ((i, n), (n, i)):
                if x + y <= 7 and (x, y) not in o:
                    o.append((x, y))
    assert len(o) == 36
    return o

def gen_k2(a):
    name = "k2_kernel"
    prologue(a, name)
    V = Regs("v", 2, 256)
    done = a.label("k2done"); moe = a.label("moe")
    a(f"""
    s_cmp_ge_u32 s2, 256
    s_cbranch_scc1 {done}
    s_load_dwordx4 s[4:7], s[0:1], 32
    s_load_dwordx2 s[14:15], s[0:1], 104
    v_lshrrev_b32 v1, 6, v0
    s_and_b32 s41, s2, 7
    v_readfirstlane_b32 s40, v1
    s_lshr_b32 s42, s2, 3
    s_cmp_ge_u32 s42, 27
    s_cbranch_scc1 {moe}
    s_mul_i32 s43, s41, 27
    s_add_u32 s43, s43, s42
    s_cmp_ge_u32 s43, 214
    s_cbranch_scc1 {done}
    s_mul_i32 s44, s43, 3
    """)
    vlane = V.alloc(); vt0 = V.alloc(); vt1 = V.alloc(); vt2 = V.alloc()
    SH, SD, SU, SY = 16, 20, 24, 28
    a(f"v_and_b32 {v(vlane)}, 63, v0\ns_waitcnt lgkmcnt(0)")
    a.srd(SH, 4, 640 * 4096); a.srd(SD, 6, 1280); a.srd(SU, 14, QSZ); a.srd(SY, 14, QSZ, add=Y_OFF)
    hfill = a.label("hfill"); filled = a.label("filled")
    a(f"s_cmp_ge_u32 s40, 5\ns_cbranch_scc1 {hfill}")
    a(f"s_mul_i32 s45, s40, 192\ns_lshl_b32 s46, s44, 4\ns_sub_u32 s46, s46, {32*10240}\ns_mov_b32 s47, 0x55555556\ns_movk_i32 s48, 10240")
    for i in range(3):
        a(f"""
        v_add_u32 {v(vt0)}, s45, {v(vlane)}
        v_mul_hi_u32 {v(vt1)}, {v(vt0)}, s47
        v_mul_u32_u24 {v(vt2)}, 3, {v(vt1)}
        v_sub_u32 {v(vt2)}, {v(vt0)}, {v(vt2)}
        v_mul_lo_u32 {v(vt1)}, {v(vt1)}, s48
        v_lshl_add_u32 {v(vt1)}, {v(vt2)}, 4, {v(vt1)}
        v_add_u32 {v(vt1)}, s46, {v(vt1)}
        s_lshl_b32 s49, s45, 4
        s_add_u32 s49, s49, {UB}
        s_mov_b32 m0, s49
        s_add_u32 s45, s45, 64
        buffer_load_dwordx4 {v(vt1)}, {s(SU,4)}, 0 offen lds
        """)
    m = V.mark()
    B2 = V.alloc(2, 2)
    a(f"""
    s_cmp_lg_u32 s40, 4
    s_cbranch_scc1 {filled}
    v_lshrrev_b32 {v(vt0)}, 4, {v(vlane)}
    v_add_u32 {v(vt1)}, s44, {v(vt0)}
    v_lshlrev_b32 {v(vt1)}, 12, {v(vt1)}
    buffer_load_dwordx2 {v(B2,2)}, {v(vt1)}, {s(SH,4)}, 0 offen
    v_lshrrev_b32 {v(vt1)}, 2, {v(vlane)}
    v_mul_u32_u24 {v(vt0)}, {HCOPY}, {v(vt1)}
    v_and_b32 {v(vt2)}, 3, {v(vlane)}
    v_lshl_add_u32 {v(vt0)}, {v(vt2)}, 3, {v(vt0)}
    v_and_b32 {v(vt1)}, 3, {v(vt1)}
    v_cmp_eq_u32 s[50:51], 3, {v(vt2)}
    v_cmp_ne_u32 vcc, 0, {v(vt1)}
    s_and_b64 vcc, vcc, s[50:51]
    v_lshlrev_b32 {v(vt1)}, 4, {v(vt1)}
    v_sub_u32 {v(vt1)}, 64, {v(vt1)}
    s_waitcnt vmcnt(0)
    v_lshlrev_b64 {v(B2,2)}, {v(vt1)}, {v(B2,2)}
    v_cndmask_b32 {v(B2)}, 0, {v(B2)}, vcc
    v_cndmask_b32 {v(B2+1)}, 0, {v(B2+1)}, vcc
    v_cmp_gt_u32 vcc, 48, {v(vlane)}
    s_and_saveexec_b64 s[50:51], vcc
    ds_write_b64 {v(vt0)}, {v(B2,2)}
    s_mov_b64 exec, s[50:51]
    s_branch {filled}
    """)
    V.reset(m)
    a(f"{hfill}:")
    HA = V.alloc(16, 4); HBb = V.alloc(16, 4); HC = V.alloc(16, 4); HO = V.alloc(8, 4)
    a(f"""
    s_sub_u32 s45, s40, 5
    s_add_u32 s46, s44, s45
    s_lshl_b32 s46, s46, 12
    v_lshlrev_b32 {v(vt0)}, 4, {v(vlane)}
    """)
    for i in range(4):
        a(f"buffer_load_dwordx4 {v(HA+4*i,4)}, {v(vt0)}, {s(SH,4)}, s46 offen offset:{1024*i}")
        a(f"buffer_load_dwordx4 {v(HBb+4*i,4)}, {v(vt0)}, {s(SH,4)}, s46 offen offset:{1024*i+4}")
        a(f"buffer_load_dwordx4 {v(HC+4*i,4)}, {v(vt0)}, {s(SH,4)}, s46 offen offset:{1024*i+8}")
    a(f"s_mul_i32 s45, s45, {HCH}\nv_add_u32 {v(vt0)}, s45, {v(vt0)}")
    for i in range(4):
        a(f"s_waitcnt vmcnt({9-3*i})")
        for d in range(4):
            a(f"v_alignbit_b32 {v(HO+d)}, {v(HBb+4*i+d)}, {v(HA+4*i+d)}, 16")
            a(f"v_alignbit_b32 {v(HO+4+d)}, {v(HC+4*i+d)}, {v(HBb+4*i+d)}, 16")
        o = 32 + 1024 * i
        a(f"ds_write_b128 {v(vt0)}, {v(HA+4*i,4)} offset:{o}")
        a(f"ds_write_b128 {v(vt0)}, {v(HO,4)} offset:{o+HCOPY}")
        a(f"ds_write_b128 {v(vt0)}, {v(HBb+4*i,4)} offset:{o+2*HCOPY}")
        a(f"ds_write_b128 {v(vt0)}, {v(HO+4,4)} offset:{o+3*HCOPY}")
        if i < 3: a("s_waitcnt lgkmcnt(0)")
    V.reset(m)
    a(f"{filled}:")
    a(f"""
    s_waitcnt vmcnt(0) lgkmcnt(0)
    s_barrier
    s_cmp_ge_u32 s40, 4
    s_cbranch_scc1 {done}
    """)
    vA = V.alloc(); vB = V.alloc(); vm = V.alloc(); vq = V.alloc(); vD = V.alloc()
    ACC = V.alloc(32, 4)
    FA = [V.alloc(32, 4), V.alloc(32, 4)]
    FB = [V.alloc(32, 4), V.alloc(32, 4)]
    a(f"""
    s_movk_i32 s47, 128
    s_cmp_eq_u32 s40, 3
    s_cselect_b32 s45, 0, s40
    s_cselect_b32 s46, 6, 0
    s_cselect_b32 s47, {HCH}, s47
    s_cselect_b32 s48, 16, -384
    v_and_b32 {v(vm)}, 15, {v(vlane)}
    v_lshrrev_b32 {v(vq)}, 4, {v(vlane)}
    s_add_u32 s49, s44, s45
    s_lshl_b32 s49, s49, 1
    v_mov_b32 {v(vt0)}, s49
    buffer_load_ushort {v(vD)}, {v(vt0)}, {s(SD,4)}, 0 offen
    ; e0+16 = 25 + m - 8q
    v_lshlrev_b32 {v(vt0)}, 3, {v(vq)}
    v_sub_u32 {v(vt0)}, {v(vm)}, {v(vt0)}
    v_add_u32 {v(vt0)}, 25, {v(vt0)}
    v_and_b32 {v(vt1)}, 3, {v(vt0)}
    v_sub_u32 {v(vt0)}, {v(vt0)}, {v(vt1)}
    v_mul_u32_u24 {v(vt1)}, {HCOPY}, {v(vt1)}
    v_lshl_add_u32 {v(vA)}, {v(vt0)}, 1, {v(vt1)}
    s_mul_i32 s49, s45, {HCH}
    s_lshl_b32 s50, s46, 6
    s_add_u32 s49, s49, s50
    v_add_u32 {v(vA)}, s49, {v(vA)}
    v_lshl_add_u32 {v(vt0)}, {v(vm)}, 1, {v(vq)}
    v_mul_u32_u24 {v(vB)}, 48, {v(vt0)}
    s_lshl_b32 s49, s45, 4
    s_add_u32 s49, s49, {UB + 48*30 - 192}
    s_mul_i32 s50, s46, 192
    s_sub_u32 s49, s49, s50
    v_add_u32 {v(vB)}, s49, {v(vB)}
    """)
    def frag_loads(st, second):
        L = []
        ao = 64 if second else 0
        bo = 0 if second else 192
        for n in range(8):
            L.append(f"ds_read_b64 {v(FA[st]+4*n,2)}, {v(vA)} offset:{ao+512*n}")
            L.append(f"ds_read_b64 {v(FA[st]+4*n+2,2)}, {v(vA)} offset:{ao+512*n+8}")
            L.append(f"ds_read_b128 {v(FB[st]+4*n,4)}, {v(vB)} offset:{bo+1536*n}")
        return L
    for l in frag_loads(0, False): a(l)
    for i in range(16):
        a(f"v_mov_b64 {v(ACC+2*i,2)}, 0")
    a("s_mov_b32 s49, 0")
    loop = a.label("loop")
    a(f"{loop}:")
    order = mfma_order()
    def unit(st, loads, pre=None):
        a("s_waitcnt lgkmcnt(0)")
        if pre: a(pre)
        li = 0
        for k, (x, y) in enumerate(order):
            a(f"v_mfma_f32_16x16x32_bf16 {v(ACC+4*(x+y),4)}, {v(FA[st]+4*x,4)}, {v(FB[st]+4*y,4)}, {v(ACC+4*(x+y),4)}")
            if li < len(loads):
                a(loads[li]); li += 1
    unit(0, frag_loads(1, True))
    unit(1, frag_loads(0, False), pre=f"v_add_u32 {v(vA)}, s47, {v(vA)}\nv_add_u32 {v(vB)}, s48, {v(vB)}")
    noflush = a.label("noflush")
    a(f"""
    s_cmp_lg_u32 s40, 3
    s_cbranch_scc1 {noflush}
    s_lshl_b32 s50, s49, 13
    s_add_u32 s50, s50, {RB}
    v_lshl_add_u32 {v(vt0)}, {v(vlane)}, 4, s50
    s_nop 7
    """)
    for t in range(8):
        a(f"ds_write_b128 {v(vt0)}, {v(ACC+4*t,4)} offset:{1024*t}")
    a("s_waitcnt lgkmcnt(0)")
    for i in range(16):
        a(f"v_mov_b64 {v(ACC+2*i,2)}, 0")
    a(f"""
    {noflush}:
    s_add_u32 s49, s49, 1
    s_cmp_lt_u32 s49, 3
    s_cbranch_scc1 {loop}
    s_waitcnt lgkmcnt(0)
    s_barrier
    s_cmp_eq_u32 s40, 3
    s_cbranch_scc1 {done}
    s_add_u32 s49, s44, s40
    s_cmp_ge_u32 s49, 640
    s_cbranch_scc1 {done}
    """)
    P = FA[0]; UU = FB[0]; T = FA[1]
    a(f"""
    s_lshl_b32 s50, s40, 13
    s_add_u32 s50, s50, {RB}
    v_lshl_add_u32 {v(vt0)}, {v(vlane)}, 4, s50
    v_lshrrev_b32 {v(vt1)}, 1, {v(vq)}
    v_lshl_add_u32 {v(vt1)}, {v(vm)}, 1, {v(vt1)}
    v_and_b32 {v(vt2)}, 1, {v(vq)}
    v_mul_u32_u24 {v(vB)}, 48, {v(vt1)}
    v_lshlrev_b32 {v(vA)}, 3, {v(vt2)}
    v_sub_u32 {v(vB)}, {v(vB)}, {v(vA)}
    s_lshl_b32 s50, s40, 4
    s_add_u32 s50, s50, {UB + 48*32 + 8}
    v_add_u32 {v(vB)}, s50, {v(vB)}
    s_movk_i32 s50, 10240
    v_mul_lo_u32 {v(vt1)}, {v(vt1)}, s50
    v_add_u32 {v(vA)}, {v(vA)}, {v(vt1)}
    s_lshl_b32 s50, s49, 4
    v_add_u32 {v(vA)}, s50, {v(vA)}
    """)
    for t in range(8):
        a(f"ds_read_b128 {v(P+4*t,4)}, {v(vt0)} offset:{1024*t}")
    a("s_waitcnt lgkmcnt(4)")
    for t in range(8):
        a(f"ds_read_b64 {v(UU+2*t,2)}, {v(vB)} offset:{1536*t}")
    a(f"s_waitcnt vmcnt(0)\nv_lshlrev_b32 {v(vD)}, 16, {v(vD)}\ns_mov_b32 s50, 0\ns_waitcnt lgkmcnt(0)")
    for t in range(8):
        A0 = ACC + 4*t
        a(f"v_pk_add_f32 {v(A0,2)}, {v(A0,2)}, {v(P+4*t,2)}")
        a(f"v_pk_add_f32 {v(A0+2,2)}, {v(A0+2,2)}, {v(P+4*t+2,2)}")
        a(f"v_cvt_pk_bf16_f32 {v(T)}, {v(A0)}, {v(A0+1)}")
        a(f"v_cvt_pk_bf16_f32 {v(T+1)}, {v(A0+2)}, {v(A0+3)}")
        a.unpack(A0, A0+1, T); a.unpack(A0+2, A0+3, T+1)
        a.unpack(T+5, T+4, UU+2*t)
        a.unpack(T+3, T+2, UU+2*t+1)
        for r in range(4):
            a(f"v_mul_f32 {v(T+2+r)}, {v(T+2+r)}, {v(vD)}")
        a(f"v_cvt_pk_bf16_f32 {v(T)}, {v(T+2)}, {v(T+3)}")
        a(f"v_cvt_pk_bf16_f32 {v(T+1)}, {v(T+4)}, {v(T+5)}")
        a.unpack(T+2, T+3, T); a.unpack(T+4, T+5, T+1)
        a(f"v_pk_add_f32 {v(A0,2)}, {v(A0,2)}, {v(T+2,2)}")
        a(f"v_pk_add_f32 {v(A0+2,2)}, {v(A0+2,2)}, {v(T+4,2)}")
        a(f"v_cvt_pk_bf16_f32 {v(P+4*t)}, {v(A0)}, {v(A0+1)}")
        a(f"v_cvt_pk_bf16_f32 {v(P+4*t+1)}, {v(A0+2)}, {v(A0+3)}")
        a(f"buffer_store_dwordx2 {v(P+4*t,2)}, {v(vA)}, {s(SY,4)}, s50 offen")
        a(f"s_add_u32 s50, s50, {32*10240}")
    a("s_endpgm")
    hi_conv = V.hi

    V = Regs("v", 2, 256)
    a(f"{moe}:")
    XS = 0; RED = 5120; HS = RED + 8192; KS = HS + 1024; RED2 = 16384
    vlane = V.alloc(); vt0 = V.alloc(); vt1 = V.alloc(); vt2 = V.alloc(); vg = V.alloc(); vd = V.alloc()
    SG, SUP, SDN, SWS, SQ = 16, 20, 24, 28, 32
    a(f"""
    s_sub_u32 s42, s42, 27
    s_lshl_b32 s42, s42, 3
    s_add_u32 s43, s42, s41
    s_cmp_ge_u32 s43, 27
    s_cbranch_scc1 {done}
    s_waitcnt lgkmcnt(0)
    s_load_dwordx4 s[4:7], s[0:1], 64
    s_load_dwordx2 s[8:9], s[0:1], 80
    s_load_dwordx2 s[10:11], s[0:1], 0
    v_and_b32 {v(vlane)}, 63, v0
    v_lshrrev_b32 {v(vt0)}, 3, v0
    v_mul_u32_u24 {v(vg)}, 3456, {v(vt0)}
    v_and_b32 {v(vt1)}, 7, v0
    v_lshl_add_u32 {v(vg)}, {v(vt1)}, 4, {v(vg)}
    v_lshlrev_b32 {v(vd)}, 4, v0
    s_waitcnt lgkmcnt(0)
    """)
    a.srd(SG, 4, 640*3456); a.srd(SUP, 6, 640*3456); a.srd(SDN, 8, 1728*1280); a.srd(SWS, 14, WS_USED); a.srd(SQ, 10, QSZ)
    KEYS = V.alloc(4, 4)
    WG = V.alloc(40, 4); WU = V.alloc(40, 4); WD = V.alloc(44, 4)
    a(f"s_mov_b32 s44, {KEY_OFF}\nbuffer_load_dwordx4 {v(KEYS,4)}, {v(vd)}, {s(SWS,4)}, s44 offen")
    a("s_lshl_b32 s44, s43, 7")
    for i in range(10):
        a(f"buffer_load_dwordx4 {v(WG+4*i,4)}, {v(vg)}, {s(SG,4)}, s44 offen")
        a(f"buffer_load_dwordx4 {v(WU+4*i,4)}, {v(vg)}, {s(SUP,4)}, s44 offen")
        if i < 9: a(f"s_add_u32 s44, s44, {64*3456}")
    a("s_mul_i32 s44, s43, 81920")
    for i in range(11):
        a(f"buffer_load_dwordx4 {v(WD+4*i,4)}, {v(vd)}, {s(SDN,4)}, s44 offen")
        if i < 10: a("s_add_u32 s44, s44, 7680")
    k1 = V.alloc(); k2 = V.alloc(); o1 = V.alloc(); o2 = V.alloc()
    def merge():
        a(f"v_min_u32 {v(vt0)}, {v(k1)}, {v(o1)}\nv_max_u32 {v(k1)}, {v(k1)}, {v(o1)}\nv_max3_u32 {v(k2)}, {v(k2)}, {v(o2)}, {v(vt0)}")
    a(f"""
    s_waitcnt vmcnt(31)
    v_max_u32 {v(k1)}, {v(KEYS)}, {v(KEYS+1)}
    v_min_u32 {v(k2)}, {v(KEYS)}, {v(KEYS+1)}
    v_max_u32 {v(o1)}, {v(KEYS+2)}, {v(KEYS+3)}
    v_min_u32 {v(o2)}, {v(KEYS+2)}, {v(KEYS+3)}
    """)
    merge()
    def dpp_top2(steps):
        for st in steps:
            a(f"v_mov_b32 {v(o1)}, 0\nv_mov_b32 {v(o2)}, 0\ns_nop 0")
            a(f"v_mov_b32_dpp {v(o1)}, {v(k1)} {st}\nv_mov_b32_dpp {v(o2)}, {v(k2)} {st}")
            merge()
    dpp_top2(["row_shr:1 row_mask:0xf bank_mask:0xf", "row_shr:2 row_mask:0xf bank_mask:0xf", "row_shr:4 row_mask:0xf bank_mask:0xf",
              "row_shr:8 row_mask:0xf bank_mask:0xf", "row_bcast:15 row_mask:0xa bank_mask:0xf", "row_bcast:31 row_mask:0xc bank_mask:0xf"])
    a(f"""
    s_lshl_b32 s44, s40, 3
    s_add_u32 s44, s44, {KS}
    v_mov_b32 {v(vt0)}, s44
    v_cmp_eq_u32 vcc, 63, {v(vlane)}
    s_and_saveexec_b64 s[46:47], vcc
    ds_write2_b32 {v(vt0)}, {v(k1)}, {v(k2)} offset0:0 offset1:1
    s_mov_b64 exec, s[46:47]
    s_waitcnt lgkmcnt(0)
    s_barrier
    v_and_b32 {v(vt0)}, 7, {v(vlane)}
    v_lshlrev_b32 {v(vt0)}, 3, {v(vt0)}
    ds_read_b32 {v(k1)}, {v(vt0)} offset:{KS}
    ds_read_b32 {v(k2)}, {v(vt0)} offset:{KS+4}
    s_waitcnt lgkmcnt(0)
    """)
    dpp_top2(["row_shr:1 row_mask:0xf bank_mask:0xf", "row_shr:2 row_mask:0xf bank_mask:0xf", "row_shr:4 row_mask:0xf bank_mask:0xf"])
    XR = V.alloc(2, 2); XF = V.alloc(4, 4); XP = V.alloc(2, 2)
    a(f"""
    s_nop 0
    v_readlane_b32 s44, {v(k1)}, 7
    v_readlane_b32 s45, {v(k2)}, 7
    s_nop 3
    s_andn2_b32 s46, 0xffff, s44
    s_andn2_b32 s47, 0xffff, s45
    s_lshl_b32 s48, s46, 3
    s_add_u32 s48, s48, {ST_OFF}
    s_lshl_b32 s49, s47, 3
    s_add_u32 s49, s49, {ST_OFF}
    s_load_dwordx2 s[52:53], s[14:15], s48
    s_load_dwordx2 s[54:55], s[14:15], s49
    s_mul_i32 s46, s46, 1280
    s_mul_i32 s47, s47, 1280
    v_lshlrev_b32 {v(vt0)}, 2, v0
    buffer_load_dword {v(XR)}, {v(vt0)}, {s(SQ,4)}, s46 offen
    buffer_load_dword {v(XR+1)}, {v(vt0)}, {s(SQ,4)}, s47 offen
    v_mov_b32 {v(XP)}, s44
    v_mov_b32 {v(XP+1)}, s45
    v_or_b32 {v(vt1)}, s43, v0
    v_cmp_eq_u32 vcc, 0, {v(vt1)}
    s_and_saveexec_b64 s[56:57], vcc
    s_mov_b32 s48, {TOP_OFF}
    buffer_store_dwordx2 {v(XP,2)}, {v(vt1)}, {s(SWS,4)}, s48 offen
    s_mov_b64 exec, s[56:57]
    s_waitcnt vmcnt(0) lgkmcnt(0)
    """)
    for tok, (sm, sr) in enumerate(((52, 53), (54, 55))):
        a.unpack(XF+tok, XF+2+tok, XR+tok)
        a(f"v_subrev_f32 {v(XF+tok)}, s{sm}, {v(XF+tok)}\nv_subrev_f32 {v(XF+2+tok)}, s{sm}, {v(XF+2+tok)}")
        a(f"v_cvt_pk_bf16_f32 {v(XR+tok)}, {v(XF+tok)}, {v(XF+2+tok)}")
        a.unpack(XF+tok, XF+2+tok, XR+tok)
        a(f"v_mul_f32 {v(XF+tok)}, s{sr}, {v(XF+tok)}\nv_mul_f32 {v(XF+2+tok)}, s{sr}, {v(XF+2+tok)}")
        a(f"v_cvt_pk_bf16_f32 {v(XR+tok)}, {v(XF+tok)}, {v(XF+2+tok)}")
        a.unpack(XF+tok, XF+2+tok, XR+tok)
    a(f"""
    v_cmp_gt_u32 vcc, 320, v0
    s_and_saveexec_b64 s[56:57], vcc
    ds_write_b128 {v(vd)}, {v(XF,4)} offset:{XS}
    s_mov_b64 exec, s[56:57]
    s_waitcnt lgkmcnt(0)
    s_barrier
    """)
    XV = V.alloc(22, 2); AC = V.alloc(32, 2); WF = V.alloc(8, 2)
    a(f"v_lshrrev_b32 {v(vt0)}, 3, v0\nv_lshlrev_b32 {v(vt0)}, 3, {v(vt0)}")
    for i in range(10):
        a(f"ds_read_b64 {v(XV+2*i,2)}, {v(vt0)} offset:{XS+512*i}")
    for i in range(16):
        a(f"v_mov_b64 {v(AC+2*i,2)}, 0")
    a("s_waitcnt lgkmcnt(0)")
    def fma_piece(W, acc, xv):
        for d in range(4):
            a.unpack(WF+2*d, WF+2*d+1, W+d)
        for d in range(4):
            a(f"v_pk_fma_f32 {v(acc+4*d,2)}, {v(WF+2*d,2)}, {v(xv,2)}, {v(acc+4*d,2)} op_sel:[0,0,0] op_sel_hi:[0,1,1]")
            a(f"v_pk_fma_f32 {v(acc+4*d+2,2)}, {v(WF+2*d,2)}, {v(xv,2)}, {v(acc+4*d+2,2)} op_sel:[1,0,0] op_sel_hi:[1,1,1]")
    for i in range(10):
        fma_piece(WG+4*i, AC, XV+2*i)
        fma_piece(WU+4*i, AC+16, XV+2*i)
    a("s_nop 1")
    for i in range(16):
        a(f"v_permlane32_swap_b32 {v(AC+i)}, {v(AC+16+i)}")
    a("s_nop 0")
    for i in range(16):
        a(f"v_add_f32 {v(AC+i)}, {v(AC+i)}, {v(AC+16+i)}")
    a("s_nop 1")
    for i in range(8):
        a(f"v_permlane16_swap_b32 {v(AC+i)}, {v(AC+8+i)}")
    a("s_nop 0")
    for i in range(8):
        a(f"v_add_f32 {v(AC+i)}, {v(AC+i)}, {v(AC+8+i)}")
    a("s_nop 1")
    for i in range(8):
        a(f"v_add_f32_dpp {v(AC+i)}, {v(AC+i)}, {v(AC+i)} row_ror:8 row_mask:0xf bank_mask:0xf")
    a(f"""
    v_lshrrev_b32 {v(vt0)}, 5, {v(vlane)}
    v_lshlrev_b32 {v(vt0)}, 9, {v(vt0)}
    v_and_b32 {v(vt1)}, 7, {v(vlane)}
    v_lshl_add_u32 {v(vt0)}, {v(vt1)}, 6, {v(vt0)}
    v_and_b32 {v(vt1)}, 16, {v(vlane)}
    v_lshl_add_u32 {v(vt0)}, {v(vt1)}, 1, {v(vt0)}
    s_lshl_b32 s48, s40, 10
    v_add_u32 {v(vt0)}, s48, {v(vt0)}
    ds_write_b128 {v(vt0)}, {v(AC,4)} offset:{RED}
    ds_write_b128 {v(vt0)}, {v(AC+4,4)} offset:{RED+16}
    s_waitcnt lgkmcnt(0)
    s_barrier
    v_and_b32 {v(vt0)}, 127, v0
    v_lshlrev_b32 {v(vt0)}, 2, {v(vt0)}
    """)
    for w in range(8):
        a(f"ds_read_b32 {v(AC+w)}, {v(vt0)} offset:{RED+1024*w}")
    a("s_waitcnt lgkmcnt(6)")
    for w in range(8):
        a(f"ds_read_b32 {v(AC+8+w)}, {v(vt0)} offset:{RED+1024*w+512}")
    a("s_waitcnt lgkmcnt(0)")
    for w in range(1, 8):
        a(f"v_add_f32 {v(AC)}, {v(AC)}, {v(AC+w)}\nv_add_f32 {v(AC+8)}, {v(AC+8)}, {v(AC+8+w)}")
    g, u_, t_ = AC, AC+8, AC+1
    a(f"""
    v_cvt_pk_bf16_f32 {v(t_)}, {v(g)}, {v(u_)}
    v_lshlrev_b32 {v(g)}, 16, {v(t_)}
    v_and_b32 {v(u_)}, 0xffff0000, {v(t_)}
    v_mul_f32 {v(t_)}, 0xbfb8aa3b, {v(g)}
    v_exp_f32 {v(t_)}, {v(t_)}
    s_nop 0
    v_add_f32 {v(t_)}, 1.0, {v(t_)}
    v_rcp_f32 {v(t_)}, {v(t_)}
    s_nop 0
    v_mul_f32 {v(g)}, {v(g)}, {v(t_)}
    v_cvt_pk_bf16_f32 {v(t_)}, {v(g)}, {v(g)}
    v_lshlrev_b32 {v(g)}, 16, {v(t_)}
    v_mul_f32 {v(g)}, {v(g)}, {v(u_)}
    v_cvt_pk_bf16_f32 {v(t_)}, {v(g)}, {v(g)}
    v_lshlrev_b32 {v(g)}, 16, {v(t_)}
    v_cmp_gt_u32 vcc, 128, v0
    v_lshlrev_b32 {v(vt0)}, 2, v0
    s_nop 0
    v_cndmask_b32 {v(g)}, 0, {v(g)}, vcc
    v_cmp_gt_u32 vcc, 256, v0
    s_and_saveexec_b64 s[56:57], vcc
    ds_write_b32 {v(vt0)}, {v(g)} offset:{HS}
    s_mov_b64 exec, s[56:57]
    s_waitcnt lgkmcnt(0)
    s_barrier
    s_mov_b32 s48, 0x3333334
    v_mul_hi_u32 {v(vt0)}, v0, s48
    v_lshlrev_b32 {v(vt0)}, 3, {v(vt0)}
    """)
    for i in range(11):
        a(f"ds_read_b64 {v(XV+2*i,2)}, {v(vt0)} offset:{HS+48*i}")
    for i in range(8):
        a(f"v_mov_b64 {v(AC+2*i,2)}, 0")
    a("s_waitcnt lgkmcnt(0)")
    for i in range(11):
        fma_piece(WD+4*i, AC, XV+2*i)
    a(f"v_lshlrev_b32 {v(vt0)}, 6, v0")
    for d in range(4):
        a(f"ds_write_b128 {v(vt0)}, {v(AC+4*d,4)} offset:{RED2+16*d}")
    a(f"""
    s_waitcnt lgkmcnt(0)
    s_barrier
    s_cmp_ge_u32 s40, 5
    s_cbranch_scc1 {done}
    """)
    for g_ in range(6):
        a(f"ds_read_b128 {v(AC+4*g_,4)}, {v(vd)} offset:{RED2+5120*g_}")
    a("s_waitcnt lgkmcnt(0)")
    for g_ in range(1, 6):
        a(f"v_pk_add_f32 {v(AC,2)}, {v(AC,2)}, {v(AC+4*g_,2)}\nv_pk_add_f32 {v(AC+2,2)}, {v(AC+2,2)}, {v(AC+4*g_+2,2)}")
    a(f"""
    s_mul_i32 s48, s43, 5120
    s_add_u32 s48, s48, {PART_OFF}
    buffer_store_dwordx4 {v(AC,4)}, {v(vd)}, {s(SWS,4)}, s48 offen
    {done}:
    s_endpgm
    """)
    return name, max(hi_conv, V.hi), 64

def gen_k3(a):
    name = "k3_kernel"
    prologue(a, name)
    V = Regs("v", 1, 256)
    done = a.label("k3done")
    SQ, SO, SWS = 8, 12, 16
    voff = V.alloc(); vy = V.alloc(); vp = V.alloc()
    X = V.alloc(8); Y = V.alloc(8, 4)
    a(f"""
    s_cmp_ge_u32 s2, 256
    s_cbranch_scc1 {done}
    s_load_dwordx2 s[4:5], s[0:1], 0
    s_load_dwordx2 s[6:7], s[0:1], 88
    s_load_dwordx2 s[20:21], s[0:1], 104
    s_mul_i32 s3, s2, 10240
    s_movk_i32 s41, 5120
    v_lshl_add_u32 {v(voff)}, v0, 2, s3
    v_lshl_add_u32 {v(vy)}, v0, 5, s3
    v_lshlrev_b32 {v(vp)}, 4, v0
    s_lshl_b32 s22, s2, 6
    s_add_u32 s22, s22, {ST_OFF}
    s_mov_b32 s23, {TOP_OFF}
    s_mov_b32 s40, {Y_OFF}
    s_waitcnt lgkmcnt(0)
    s_load_dwordx16 s[24:39], s[20:21], s22
    s_load_dwordx2 s[42:43], s[20:21], s23
    """)
    a.srd(SQ, 4, QSZ); a.srd(SO, 6, QSZ); a.srd(SWS, 20, WS_USED)
    a(f"buffer_load_dwordx4 {v(Y,4)}, {v(vy)}, {s(SWS,4)}, s40 offen")
    a(f"buffer_load_dwordx4 {v(Y+4,4)}, {v(vy)}, {s(SWS,4)}, s40 offen offset:16")
    for r in range(8):
        so = "0" if r < 4 else "s41"
        a(f"buffer_load_dword {v(X+r)}, {v(voff)}, {s(SQ,4)}, {so} offen offset:{1280*(r%4)}")
    UPD = V.alloc(4, 4)
    PB = V.alloc(27*4, 4)
    t0 = V.alloc(); t1 = V.alloc()
    nomoe = a.label("nomoe")
    a(f"""
    v_mov_b64 {v(UPD,2)}, 0
    v_mov_b64 {v(UPD+2,2)}, 0
    s_waitcnt lgkmcnt(0)
    s_andn2_b32 s44, 0xffff, s42
    s_andn2_b32 s45, 0xffff, s43
    s_lshr_b32 s46, s44, 3
    s_lshr_b32 s47, s45, 3
    s_cmp_eq_u32 s46, s2
    s_cselect_b32 s48, 1, 0
    s_cmp_eq_u32 s47, s2
    s_cselect_b32 s48, 1, s48
    s_cmp_eq_u32 s48, 0
    s_cbranch_scc1 {nomoe}
    s_mov_b32 s48, {PART_OFF}
    """)
    for e in range(27):
        a(f"buffer_load_dwordx4 {v(PB+4*e,4)}, {v(vp)}, {s(SWS,4)}, s48 offen")
        if e < 26: a("s_add_u32 s48, s48, 5120")
    for (sk, t) in ((42, t0), (43, t1)):
        a(f"""
        s_and_b32 s48, s{sk}, 0xffff0000
        s_xor_b32 s49, s48, 0x80000000
        s_andn2_b32 s50, 0xffff0000, s48
        s_bitcmp1_b32 s48, 31
        s_cselect_b32 s48, s49, s50
        v_mov_b32 {v(t)}, s48
        v_mul_f32 {v(t)}, 0xbfb8aa3b, {v(t)}
        v_exp_f32 {v(t)}, {v(t)}
        s_nop 0
        v_add_f32 {v(t)}, 1.0, {v(t)}
        v_rcp_f32 {v(t)}, {v(t)}
        s_nop 0
        v_cvt_pk_bf16_f32 {v(t)}, {v(t)}, {v(t)}
        v_lshlrev_b32 {v(t)}, 16, {v(t)}
        """)
    a("s_waitcnt vmcnt(0)")
    for e in range(27):
        a(f"v_pk_add_f32 {v(UPD,2)}, {v(UPD,2)}, {v(PB+4*e,2)}\nv_pk_add_f32 {v(UPD+2,2)}, {v(UPD+2,2)}, {v(PB+4*e+2,2)}")
    a(f"v_cvt_pk_bf16_f32 {v(PB)}, {v(UPD)}, {v(UPD+1)}\nv_cvt_pk_bf16_f32 {v(PB+1)}, {v(UPD+2)}, {v(UPD+3)}")
    a.unpack(UPD, UPD+1, PB); a.unpack(UPD+2, UPD+3, PB+1)
    a(f"""
    v_mul_f32 {v(UPD)}, {v(UPD)}, {v(t0)}
    v_mul_f32 {v(UPD+1)}, {v(UPD+1)}, {v(t1)}
    v_mul_f32 {v(UPD+2)}, {v(UPD+2)}, {v(t0)}
    v_mul_f32 {v(UPD+3)}, {v(UPD+3)}, {v(t1)}
    v_cvt_pk_bf16_f32 {v(PB)}, {v(UPD)}, {v(UPD+1)}
    v_cvt_pk_bf16_f32 {v(PB+1)}, {v(UPD+2)}, {v(UPD+3)}
    """)
    a.unpack(UPD, UPD+1, PB); a.unpack(UPD+2, UPD+3, PB+1)
    a(f"{nomoe}:")
    a("s_waitcnt vmcnt(0)\ns_lshl_b32 s46, s2, 3")
    XF = V.alloc(2, 2); XN = V.alloc(2, 2); YF = V.alloc(2, 2); T = V.alloc(); OUT = V.alloc(8); UR = V.alloc(2, 2)
    for r in range(8):
        sm, sr = 24 + 2*r, 25 + 2*r
        a.unpack(XF, XF+1, X+r)
        a(f"v_subrev_f32 {v(XN)}, s{sm}, {v(XF)}\nv_subrev_f32 {v(XN+1)}, s{sm}, {v(XF+1)}")
        a(f"v_cvt_pk_bf16_f32 {v(T)}, {v(XN)}, {v(XN+1)}")
        a.unpack(XN, XN+1, T)
        a(f"v_mul_f32 {v(XN)}, s{sr}, {v(XN)}\nv_mul_f32 {v(XN+1)}, s{sr}, {v(XN+1)}")
        a(f"v_cvt_pk_bf16_f32 {v(T)}, {v(XN)}, {v(XN+1)}")
        a.unpack(XN, XN+1, T)
        if r % 2 == 0:
            a(f"v_lshlrev_b32 {v(YF)}, 16, {v(Y+r//2)}\nv_lshlrev_b32 {v(YF+1)}, 16, {v(Y+4+r//2)}")
        else:
            a(f"v_and_b32 {v(YF)}, 0xffff0000, {v(Y+r//2)}\nv_and_b32 {v(YF+1)}, 0xffff0000, {v(Y+4+r//2)}")
        a(f"v_pk_mul_f32 {v(YF,2)}, {v(YF,2)}, {v(XN,2)}")
        a(f"v_cvt_pk_bf16_f32 {v(T)}, {v(YF)}, {v(YF+1)}")
        a.unpack(YF, YF+1, T)
        a(f"v_pk_add_f32 {v(YF,2)}, {v(YF,2)}, {v(XF,2)}")
        a(f"v_cvt_pk_bf16_f32 {v(T)}, {v(YF)}, {v(YF+1)}")
        a.unpack(YF, YF+1, T)
        for tok, si in ((0, 44), (1, 45)):
            sk = a.label("skiprow")
            a(f"""
            s_cmp_lg_u32 s46, s{si}
            s_cbranch_scc1 {sk}
            v_add_f32 {v(XN)}, {v(XN)}, {v(UPD+tok)}
            v_add_f32 {v(XN+1)}, {v(XN+1)}, {v(UPD+2+tok)}
            v_cvt_pk_bf16_f32 {v(T)}, {v(XN)}, {v(XN+1)}
            """)
            a.unpack(XN, XN+1, T)
            a(f"{sk}:")
        a(f"v_pk_add_f32 {v(YF,2)}, {v(YF,2)}, {v(XN,2)}")
        a(f"v_cvt_pk_bf16_f32 {v(OUT+r)}, {v(YF)}, {v(YF+1)}")
        so = "0" if r < 4 else "s41"
        a(f"buffer_store_dword {v(OUT+r)}, {v(voff)}, {s(SO,4)}, {so} offen offset:{1280*(r%4)}")
        a("s_add_u32 s46, s46, 1")
    a(f"{done}:\ns_endpgm")
    return name, V.hi, 56

def main(out):
    hdr = open("cdna_kernels/%s.s.ref" % NAME).read().split("; Override launch")[0]
    a = Asm()
    a('.amdgcn_target "amdgcn-amd-amdhsa--gfx950"\n.text')
    ks = [gen_k1(a), gen_k2(a), gen_k3(a)]
    txt = hdr
    txt += "; @launch kernel=k1_kernel grid=(256,1,1) block=(512,1,1) lds=0\n"
    txt += f"; @launch kernel=k2_kernel grid=(256,1,1) block=(512,1,1) lds={LDS2}\n"
    txt += "; @launch kernel=k3_kernel grid=(256,1,1) block=(320,1,1) lds=0\n"
    txt += a.text()
    txt += '.section .rodata,"a"\n'
    for (n, vg, sg) in ks:
        txt += ".p2align 6\n" + kernel_desc(n, vg, sg)
        print(n, "vgpr", vg, "sgpr", sg)
    open(out, "w").write(txt)

if __name__ == "__main__":
    main(sys.argv[1] if len(sys.argv) > 1 else "cdna_kernels/%s.s" % NAME)
```

```python
class Regs:
    def __init__(self, prefix, start, limit):
        self.p = prefix; self.n = start; self.limit = limit; self.hi = start
    def alloc(self, cnt=1, align=1):
        self.n = (self.n + align - 1) // align * align
        r = self.n; self.n += cnt
        assert self.n <= self.limit, (self.p, self.n, self.limit)
        self.hi = max(self.hi, self.n)
        return r
    def mark(self): return self.n
    def reset(self, m): self.n = m

def v(i, n=1): return f"v{i}" if n == 1 else f"v[{i}:{i+n-1}]"
def s(i, n=1): return f"s{i}" if n == 1 else f"s[{i}:{i+n-1}]"

class Asm:
    def __init__(self):
        self.lines = []
        self.uid = 0
    def __call__(self, txt):
        for l in txt.strip("\n").split("\n"):
            l = l.strip()
            if not l: continue
            if l.endswith(":") or l.startswith(".") or l.startswith(";"):
                self.lines.append(l)
            else:
                self.lines.append("    " + l)
    stamps = False
    STAMP_OFF = 8 << 20
    def stamp_init(self):
        if not self.stamps: return
        self("s_memrealtime s[70:71]")
        for i in range(1, 14): self(f"s_mov_b32 s{70+2*i}, 0")
    def stamp(self, i):
        if not self.stamps: return
        self(f"s_memrealtime s[{70+2*i}:{71+2*i}]")
    def stamp_flush(self, kidx):
        if not self.stamps: return
        self(f"""
        s_mov_b64 exec, -1
        s_memrealtime s[96:97]
        s_waitcnt vmcnt(0)
        s_memrealtime s[98:99]
        s_load_dwordx2 s[60:61], s[0:1], 104
        v_lshrrev_b32 v1, 6, v0
        v_lshlrev_b32 v1, 6, v1
        s_lshl_b32 s62, s2, 10
        s_add_u32 s62, s62, {self.STAMP_OFF + kidx * 512 * 1024}
        v_add_u32 v1, s62, v1
        v_and_b32 v2, 63, v0
        v_cmp_eq_u32 vcc, 0, v2
        s_waitcnt lgkmcnt(0)
        s_and_saveexec_b64 s[64:65], vcc
        """)
        for i in range(15):
            self(f"v_mov_b32 v2, s{70+2*i}\nglobal_store_dword v1, v2, s[60:61] offset:{4*i}")
    def label(self, base):
        self.uid += 1
        return f"L_{base}_{self.uid}"
    def text(self): return "\n".join(self.lines) + "\n"
    def srd(self, d, p, nbytes, add=None):
        if add is None:
            self(f"s_mov_b32 {s(d)}, {s(p)}\ns_mov_b32 {s(d+1)}, {s(p+1)}")
        else:
            self(f"s_add_u32 {s(d)}, {s(p)}, {add}\ns_addc_u32 {s(d+1)}, {s(p+1)}, 0")
        self(f"s_mov_b32 {s(d+2)}, {nbytes}\ns_mov_b32 {s(d+3)}, 0x20000")
    def unpack(self, lo, hi, src):
        self(f"v_lshlrev_b32 {v(lo)}, 16, {v(src)}\nv_and_b32 {v(hi)}, 0xffff0000, {v(src)}")
    def wave_sum(self, regs, op="v_add_f32"):
        steps = ["row_shr:1 row_mask:0xf bank_mask:0xf bound_ctrl:0",
                 "row_shr:2 row_mask:0xf bank_mask:0xf bound_ctrl:0",
                 "row_shr:4 row_mask:0xf bank_mask:0xf bound_ctrl:0",
                 "row_shr:8 row_mask:0xf bank_mask:0xf bound_ctrl:0",
                 "row_bcast:15 row_mask:0xa bank_mask:0xf",
                 "row_bcast:31 row_mask:0xc bank_mask:0xf"]
        pad = max(0, 2 - (len(regs) - 1))
        self("s_nop 1")
        for st in steps:
            for r in regs:
                self(f"{op}_dpp {v(r)}, {v(r)}, {v(r)} {st}")
            if pad: self(f"s_nop {pad-1}")

def kernel_desc(name, vgpr, sgpr):
    acc = (vgpr + 3) // 4 * 4
    return f""".amdhsa_kernel {name}
  .amdhsa_next_free_vgpr {vgpr}
  .amdhsa_next_free_sgpr {sgpr}
  .amdhsa_accum_offset {acc}
  .amdhsa_group_segment_fixed_size 0
  .amdhsa_kernarg_size 112
  .amdhsa_user_sgpr_count 2
  .amdhsa_user_sgpr_kernarg_segment_ptr 1
  .amdhsa_system_sgpr_workgroup_id_x 1
  .amdhsa_float_denorm_mode_32 3
.end_amdhsa_kernel
"""
```

```python
import numpy as np
def report(dws, nk=3, waves=16):
    ws = dws.to_numpy(np.uint8, ((8 << 20) + nk * 512 * 1024,))[8 << 20:]
    S = ws.view(np.uint32).reshape(nk, 512, 16, 16)[:, :256].astype(np.int64)
    valid = lambda x: (x != 0) & (x != 0x3c3c3c3c) & (x != 0x40404040) & (x != 0xa5a5a5a5) & (x != 0x3e3e3e3e)
    t0 = S[0, :, :8, 0][valid(S[0, :, :8, 0])].min()
    def groups(k):
        if k == 1:
            wg = np.arange(256); conv = (wg >> 3) < 27
            return [("conv", conv & (((wg & 7) * 27 + (wg >> 3)) < 214)), ("moe", (~conv) & ((((wg >> 3) - 27) * 8 + (wg & 7)) < 27))]
        return [("all", np.ones(256, bool))]
    for k in range(nk):
        for nm, sel in groups(k):
            print(f"kernel {k} [{nm}] (us rel. to first start; per wave: med/max)")
            for w in range(waves):
                row = []
                for i in range(15):
                    x = S[k, sel, w, i]; x = x[valid(x)]
                    x = x[np.abs(x - t0) < 100000]
                    if len(x): row.append(f"{i}:{(np.median(x)-t0)/100:.2f}/{(x.max()-t0)/100:.2f}")
                if row: print(f"  w{w} min0 {(S[k, sel, w, 0].min()-t0)/100:.2f} | " + " ".join(row))
```

```python
import sys
from asmlib import *
QSZ = 2048*1280
def gen(variant):
    a = Asm(); a.stamps = True
    a('.amdgcn_target "amdgcn-amd-amdhsa--gfx950"\n.text')
    name = "mb4_kernel"
    a(f".globl {name}\n.p2align 8\n.type {name},@function\n{name}:")
    a.stamp_init()
    a("""
    s_load_dwordx4 s[4:7], s[0:1], 0
    s_load_dwordx4 s[8:11], s[0:1], 16
    s_load_dwordx2 s[12:13], s[0:1], 32
    v_lshrrev_b32 v1, 6, v0
    s_mul_i32 s3, s2, 10240
    v_readfirstlane_b32 s40, v1
    v_and_b32 v2, 63, v0
    v_lshlrev_b32 v3, 4, v2
    s_waitcnt lgkmcnt(0)
    """)
    a.stamp(1)
    a.srd(16, 4, QSZ); a.srd(20, 6, QSZ); a.srd(24, 8, QSZ); a.srd(28, 12, QSZ)
    if variant in ("dma", "dmah"):
        a("s_lshl_b32 s41, s40, 10\ns_add_u32 s42, s41, s3\nv_add_u32 v4, s42, v3\nv_subrev_u32 v5, 3840, v4\nv_add_u32 v6, 8192, v5\nv_add_u32 v7, 8192, v4")
        a("s_mov_b32 m0, s41\ns_nop 0\nbuffer_load_dwordx4 v5, s[20:23], 0 offen lds")
        a("s_add_u32 s43, s41, 16384\ns_mov_b32 m0, s43\ns_nop 0\nbuffer_load_dwordx4 v4, s[24:27], 0 offen lds")
        a("s_add_u32 s43, s41, 32768\ns_mov_b32 m0, s43\ns_nop 0\nbuffer_load_dwordx4 v4, s[16:19], 0 offen lds")
        l1 = a.label("l1"); l2 = a.label("l2")
        a(f"s_cmp_ge_u32 s40, 6\ns_cbranch_scc1 {l1}")
        a("s_add_u32 s43, s41, 8192\ns_mov_b32 m0, s43\ns_nop 0\nbuffer_load_dwordx4 v6, s[20:23], 0 offen lds")
        a(f"{l1}:\ns_cmp_ge_u32 s40, 2\ns_cbranch_scc1 {l2}")
        a("s_add_u32 s43, s41, 16384+8192\ns_mov_b32 m0, s43\ns_nop 0\nbuffer_load_dwordx4 v7, s[24:27], 0 offen lds")
        a("s_add_u32 s43, s41, 32768+8192\ns_mov_b32 m0, s43\ns_nop 0\nbuffer_load_dwordx4 v7, s[16:19], 0 offen lds")
        a(f"{l2}:")
        a.stamp(2)
        if variant == "dmah":
            for i in range(4):
                a(f"buffer_load_dwordx4 v[{8+4*i}:{11+4*i}], v4, s[28:31], 0 offen")
                a("v_add_u32 v4, 0x9d000, v4")
            a("s_waitcnt vmcnt(4)")
        else:
            a("s_waitcnt vmcnt(0)")
        a.stamp(3)
        a("s_barrier")
        a.stamp(4)
    elif variant == "dword":
        a("v_lshl_add_u32 v4, v0, 2, s3\nv_subrev_u32 v5, 3840, v4\ns_movk_i32 s41, 5120\ns_mul_i32 s42, s40, 1280\ns_add_u32 s42, s42, s3\nv_lshl_add_u32 v6, v2, 2, s42")
        l1 = a.label("l1")
        a(f"s_cmp_ge_u32 s40, 5\ns_cbranch_scc1 {l1}")
        for r in range(3): a(f"buffer_load_dword v{8+r}, v5, s[20:23], 0 offen offset:{1280*r}")
        for r in range(8): a(f"buffer_load_dword v{11+r}, v4, s[20:23], {'0' if r<4 else 's41'} offen offset:{1280*(r%4)}")
        for r in range(8): a(f"buffer_load_dword v{19+r}, v4, s[24:27], {'0' if r<4 else 's41'} offen offset:{1280*(r%4)}")
        a(f"{l1}:")
        for i in range(5): a(f"buffer_load_dword v{27+i}, v6, s[16:19], 0 offen offset:{256*i}")
        a.stamp(2)
        a("s_waitcnt vmcnt(0)")
        a.stamp(3)
        a("s_barrier")
        a.stamp(4)
    a.stamp_flush(0)
    a("s_endpgm")
    txt = "; @launch grid=(256,1,1) block=(512,1,1) lds=65536\n" + a.text() + '.section .rodata,"a"\n.p2align 6\n' + kernel_desc(name, 64, 102)
    return txt
if __name__ == "__main__":
    if sys.argv[1] == "gen":
        for vn in ("dma", "dmah", "dword"):
            open(f"mb4_{vn}.s", "w").write(gen(vn))
    else:
        from mylib import *
        import stamps
        bufs = [DeviceBuffer(QSZ) for _ in range(13)]
        dws = DeviceBuffer(16 << 20)
        flush = DeviceBuffer(1 << 30)
        ka = pack_ptr_kernargs([b.ptr for b in bufs] + [dws.ptr])
        for vn in ("dma", "dmah", "dword"):
            asm, co = assemble(f"mb4_{vn}.s", "mb4_kernel", 14)
            k = AsmKernel(co, "mb4_kernel")
            for it in range(3):
                memset(dws, 0, 16 << 20)
                memset(flush, it, 1 << 30)
                k.launch((256,1,1),(512,1,1), ka, 65536); sync()
                print(vn, it)
                if it: stamps.report(dws, nk=1, waves=8)
```

```python
import sys
from asmlib import *

NAME = "parallel_sum__ssm_conv_h3__moe_arch_mod__prompt"
QSZ = 2048 * 1280
TBS = 214 * 64
U_OFF = 0
Y_OFF = 256 * TBS
KEY_OFF = 2 * 256 * TBS
TOP_OFF = KEY_OFF + 16384
EP_OFF = TOP_OFF + 1024
PART_OFF = EP_OFF + 128
WS_USED = PART_OFF + 27 * 10240
INV640 = "0x3acccccd"
EPS = "0x3727c5ac"
NLOG2E = "0xbfb8aa3b"
SPIN = 200000

HCOPY = 4160
HCH = 4 * HCOPY
UB = 3 * HCH
RB = UB + 13824
STB = RB + 3 * 8192
KB = STB + 64
LDS = KB + 80
XS = 0; RED = 2560; HS = RED + 5120; TK = HS + 256

PQ, PK, PV, PSK, PH, PD, PBX, PWR = 4, 6, 8, 10, 12, 14, 16, 18
PG, PU, PDN, PO = 20, 22, 24, 26
PDBG, PWS = 28, 30
SQ, SWS, SA, SB, SC = 32, 36, 48, 52, 56
sWAVE, sXCD, sSLOT, sW, sCI, sTAG, sROW, sROLE = 40, 41, 42, 43, 44, 45, 46, 47
T0, T1, T2, T3, T4, T5, T6, T7 = 60, 61, 62, 63, 64, 65, 66, 67
sCNT, sC0 = 68, 69
OPT = set(sys.argv[2:])
DPP6 = ["row_shr:1 row_mask:0xf bank_mask:0xf", "row_shr:2 row_mask:0xf bank_mask:0xf", "row_shr:4 row_mask:0xf bank_mask:0xf",
        "row_shr:8 row_mask:0xf bank_mask:0xf", "row_bcast:15 row_mask:0xa bank_mask:0xf", "row_bcast:31 row_mask:0xc bank_mask:0xf"]

def mfma_order():
    o = []
    for n in range(8):
        for i in range(n + 1):
            for (x, y) in ((i, n), (n, i)):
                if x + y <= 7 and (x, y) not in o:
                    o.append((x, y))
    return o

def poll(a, loads, tags, sleep=1):
    lp = a.label("poll"); ex = a.label("pollx")
    a(f"s_mov_b32 {s(sCNT)}, {SPIN}\ns_mov_b64 {s(T6,2)}, exec")
    a(f"{lp}:")
    for l in loads: a(l)
    a("s_waitcnt vmcnt(0)")
    for t in tags:
        a(f"v_cmpx_eq_u32 vcc, {s(sTAG)}, {v(t)}")
    a(f"""
    s_andn2_b64 {s(T6,2)}, {s(T6,2)}, exec
    s_cbranch_scc0 {ex}
    s_mov_b64 exec, {s(T6,2)}
    s_sub_u32 {s(sCNT)}, {s(sCNT)}, 1
    """)
    if sleep: a(f"s_sleep {sleep}")
    a(f"s_cmp_lg_u32 {s(sCNT)}, 0\ns_cbranch_scc1 {lp}\n{ex}:\ns_mov_b64 exec, -1")

def rnd2(a, lo, hi, t):
    a(f"v_cvt_pk_bf16_f32 {v(t)}, {v(lo)}, {v(hi)}")
    a.unpack(lo, hi, t)

def rnd1(a, r):
    a(f"v_cvt_pk_bf16_f32 {v(r)}, {v(r)}, {v(r)}\nv_lshlrev_b32 {v(r)}, 16, {v(r)}")

def sigmoid(a, t):
    a(f"""
    v_mul_f32 {v(t)}, {NLOG2E}, {v(t)}
    v_exp_f32 {v(t)}, {v(t)}
    s_nop 0
    v_add_f32 {v(t)}, 1.0, {v(t)}
    v_rcp_f32 {v(t)}, {v(t)}
    s_nop 0
    """)

def top2_dpp(a, k1, k2, o1, o2, tmp, steps):
    for st in steps:
        a(f"v_mov_b32 {v(o1)}, 0\nv_mov_b32 {v(o2)}, 0\ns_nop 0")
        a(f"v_mov_b32_dpp {v(o1)}, {v(k1)} {st}\nv_mov_b32_dpp {v(o2)}, {v(k2)} {st}")
        a(f"v_min_u32 {v(tmp)}, {v(k1)}, {v(o1)}\nv_max_u32 {v(k1)}, {v(k1)}, {v(o1)}\nv_max3_u32 {v(k2)}, {v(k2)}, {v(o2)}, {v(tmp)}")

def gen(a):
    name = NAME + "_kernel"
    a(f".globl {name}\n.p2align 8\n.type {name},@function\n{name}:\nL_start:")
    end = a.label("end"); done = a.label("done"); P3pre = a.label("p3pre"); P3poll = a.label("p3poll"); moe = a.label("moe")
    bmjoin = a.label("bmjoin"); b4join = a.label("b4join")
    a(f"s_getpc_b64 {s(T6,2)}\ns_cmp_ge_u32 s2, 256\ns_cbranch_scc1 {end}")
    a.stamp_init()
    vlane, vt0, vt1, vt2 = 1, 2, 3, 4
    a(f"""
    s_load_dwordx16 s[4:19], s[0:1], 0
    s_load_dwordx8 s[20:27], s[0:1], 64
    s_load_dwordx4 s[28:31], s[0:1], 96
    v_lshrrev_b32 {v(vt0)}, 6, v0
    s_and_b32 {s(sXCD)}, s2, 7
    v_readfirstlane_b32 {s(sWAVE)}, {v(vt0)}
    s_lshr_b32 {s(sSLOT)}, s2, 3
    s_lshl_b32 {s(sW)}, {s(sXCD)}, 5
    s_add_u32 {s(sW)}, {s(sW)}, {s(sSLOT)}
    s_mul_i32 s3, {s(sW)}, 10240
    v_and_b32 {v(vlane)}, 63, v0
    """)
    V = Regs("v", 5, 104)
    voff = V.alloc(); voffh = V.alloc(); vq = V.alloc(); vq2 = V.alloc()
    X = V.alloc(5, 4); W = V.alloc(5, 4)
    KR = V.alloc(11); VR = V.alloc(8); SKR = V.alloc(4, 2)
    PF = 160
    if "nocodepf" not in OPT:
        ncp = a.label("ncp")
        a(f"""
        s_cmp_lg_u32 {s(sSLOT)}, 31
        s_cbranch_scc1 {ncp}
        v_lshlrev_b32 {v(vt0)}, 7, v0
        v_min_u32 {v(vt0)}, {end}-L_start-8, {v(vt0)}
        global_load_dword {v(PF+4)}, {v(vt0)}, {s(T6,2)}
        {ncp}:
        """)
    a(f"""
    v_lshl_add_u32 {v(voff)}, v0, 2, s3
    v_subrev_u32 {v(voffh)}, 3840, {v(voff)}
    v_lshlrev_b32 {v(vt0)}, 4, v0
    v_lshlrev_b32 {v(vq)}, 4, {v(vlane)}
    v_lshlrev_b32 {v(vq2)}, 2, {v(vlane)}
    s_lshl_b32 {s(sROW)}, {s(sW)}, 3
    s_add_u32 {s(sROW)}, {s(sROW)}, {s(sWAVE)}
    s_mul_i32 {s(T0)}, {s(sROW)}, 1280
    s_movk_i32 {s(T1)}, 5120
    s_mov_b32 {s(T2)}, {EP_OFF}
    s_waitcnt lgkmcnt(0)
    s_load_dword {s(sTAG)}, {s(PWS,2)}, {s(T2)}
    """)
    a.stamp(1)
    a.srd(SA, PK, QSZ); a.srd(SB, PV, QSZ); a.srd(SC, PSK, 5120)
    noU = a.label("noU")
    a(f"s_cmp_ge_u32 {s(sWAVE)}, 5\ns_cbranch_scc1 {noU}")
    for r in range(3):
        a(f"buffer_load_dword {v(KR+r)}, {v(voffh)}, {s(SA,4)}, 0 offen offset:{1280*r}")
    for r in range(8):
        a(f"buffer_load_dword {v(KR+3+r)}, {v(voff)}, {s(SA,4)}, {'0' if r<4 else s(T1)} offen offset:{1280*(r%4)}")
    a(f"buffer_load_dwordx4 {v(SKR,4)}, {v(vt0)}, {s(SC,4)}, 0 offen")
    for r in range(8):
        a(f"buffer_load_dword {v(VR+r)}, {v(voff)}, {s(SB,4)}, {'0' if r<4 else s(T1)} offen offset:{1280*(r%4)}")
    a(f"{noU}:")
    a.srd(SQ, PQ, QSZ); a.srd(SC, PWR, 1280); a.srd(SWS, PWS, WS_USED)
    a(f"""
    buffer_load_dwordx4 {v(X,4)}, {v(vq)}, {s(SQ,4)}, {s(T0)} offen
    buffer_load_dword {v(X+4)}, {v(vq2)}, {s(SQ,4)}, {s(T0)} offen offset:1024
    buffer_load_dwordx4 {v(W,4)}, {v(vq)}, {s(SC,4)}, 0 offen
    buffer_load_dword {v(W+4)}, {v(vq2)}, {s(SC,4)}, 0 offen offset:1024
    s_mul_i32 {s(sCI)}, {s(sXCD)}, 27
    s_add_u32 {s(sCI)}, {s(sCI)}, {s(sSLOT)}
    s_mul_i32 {s(sC0)}, {s(sCI)}, 3
    s_cmp_ge_u32 {s(sCI)}, 214
    s_cselect_b32 {s(sROLE)}, 2, 0
    s_sub_u32 {s(T3)}, s2, 216
    s_cmp_ge_u32 {s(T3)}, 27
    s_cselect_b32 {s(T4)}, 2, 1
    s_cmp_ge_u32 {s(sSLOT)}, 27
    s_cselect_b32 {s(sROLE)}, {s(T4)}, {s(sROLE)}
    s_cselect_b32 {s(sCI)}, {s(T3)}, {s(sCI)}
    """)
    WB = 104
    a.stamp(2)
    noU2 = a.label("noU2")
    a(f"s_cmp_ge_u32 {s(sWAVE)}, 5\ns_cbranch_scc1 {noU2}")
    m = V.mark()
    KF = V.alloc(22, 4); SF = V.alloc(8, 2); UF = V.alloc(16, 2)
    O = KF
    a("s_waitcnt vmcnt(12)")
    a.stamp(3)
    for r in range(11):
        a.unpack(KF + 2*r, KF + 2*r + 1, KR + r)
    a(f"""
    v_lshlrev_b32 {v(SF+0)}, 16, {v(SKR+0)}
    v_lshlrev_b32 {v(SF+1)}, 16, {v(SKR+2)}
    v_and_b32 {v(SF+2)}, 0xffff0000, {v(SKR+0)}
    v_and_b32 {v(SF+3)}, 0xffff0000, {v(SKR+2)}
    v_lshlrev_b32 {v(SF+4)}, 16, {v(SKR+1)}
    v_lshlrev_b32 {v(SF+5)}, 16, {v(SKR+3)}
    v_and_b32 {v(SF+6)}, 0xffff0000, {v(SKR+1)}
    v_and_b32 {v(SF+7)}, 0xffff0000, {v(SKR+3)}
    """)
    for t in range(8):
        a(f"v_pk_mul_f32 {v(UF+2*t,2)}, {v(KF+2*t,2)}, {v(SF+6,2)}")
    for jj in (2, 1, 0):
        for t in range(8):
            a(f"v_pk_fma_f32 {v(UF+2*t,2)}, {v(KF+2*(t+3-jj),2)}, {v(SF+2*jj,2)}, {v(UF+2*t,2)}")
    a("s_waitcnt vmcnt(4)")
    a.stamp(4)
    for t in range(8):
        a.unpack(KF + 2*t, KF + 2*t + 1, VR + t)
    for t in range(8):
        a(f"v_pk_mul_f32 {v(UF+2*t,2)}, {v(UF+2*t,2)}, {v(KF+2*t,2)}")
    a(f"v_lshlrev_b32 {v(vt0)}, 5, v0")
    for c in range(2):
        for p in range(4):
            a(f"v_cvt_pk_bf16_f32 {v(O+4*c+p)}, {v(UF+2*(7-2*p)+c)}, {v(UF+2*(6-2*p)+c)}")
        a(f"ds_write_b128 {v(vt0)}, {v(O+4*c,4)} offset:{RB+16*c}")
    a(f"{noU2}:")
    V.reset(m)
    PUBR = V.alloc(8, 4)
    a(f"""
    v_mul_u32_u24 {v(vt0)}, 12, v0
    v_add_u32 {v(vt0)}, {RB}, {v(vt0)}
    v_add_u32 {v(vt2)}, 6144, {v(vt0)}
    s_mul_i32 {s(T2)}, {s(sW)}, {TBS}
    v_lshl_add_u32 {v(vt1)}, v0, 4, {s(T2)}
    v_cmp_gt_u32 vcc, 344, v0
    v_add_u32 {v(voff)}, 8192, {v(vt1)}
    v_mov_b32 {v(voffh)}, 0x7ffffff0
    v_cndmask_b32 {v(voff)}, {v(voffh)}, {v(voff)}, vcc
    s_waitcnt lgkmcnt(0)
    s_mul_i32 {s(sTAG)}, {s(sTAG)}, 0x9e3779b1
    s_add_u32 {s(sTAG)}, {s(sTAG)}, 0x7f4a7c15
    s_barrier
    ds_read2_b32 {v(PUBR,2)}, {v(vt0)} offset0:0 offset1:1
    ds_read_b32 {v(PUBR+2)}, {v(vt0)} offset:8
    ds_read2_b32 {v(PUBR+4,2)}, {v(vt2)} offset0:0 offset1:1
    ds_read_b32 {v(PUBR+6)}, {v(vt2)} offset:8
    v_mov_b32 {v(PUBR+3)}, {s(sTAG)}
    v_mov_b32 {v(PUBR+7)}, {s(sTAG)}
    s_waitcnt lgkmcnt(2)
    buffer_store_dwordx4 {v(PUBR,4)}, {v(vt1)}, {s(SWS,4)}, 0 offen sc1
    s_waitcnt lgkmcnt(0)
    buffer_store_dwordx4 {v(PUBR+4,4)}, {v(voff)}, {s(SWS,4)}, 0 offen sc1
    """)
    a.stamp(5)
    HA, HBb, HC, HO = 104, 120, 136, 152
    noh = a.label("noh"); nopf = a.label("nopf"); lnw = a.label("lnw")
    a(f"""
    s_waitcnt vmcnt(2)
    s_cmp_lt_u32 {s(sWAVE)}, 5
    s_cbranch_scc1 {nopf}
    s_cmp_lg_u32 {s(sROLE)}, 0
    s_cbranch_scc1 {noh}
    """)
    a.srd(SA, PH, 640 * 4096)
    a(f"""
    s_sub_u32 {s(T2)}, {s(sWAVE)}, 5
    s_add_u32 {s(T2)}, {s(T2)}, {s(sC0)}
    s_lshl_b32 {s(T2)}, {s(T2)}, 12
    """)
    for i in range(4):
        a(f"buffer_load_dwordx4 {v(HA+4*i,4)}, {v(vq)}, {s(SA,4)}, {s(T2)} offen offset:{1024*i}")
        a(f"buffer_load_dwordx4 {v(HBb+4*i,4)}, {v(vq)}, {s(SA,4)}, {s(T2)} offen offset:{1024*i+4}")
        a(f"buffer_load_dwordx4 {v(HC+4*i,4)}, {v(vq)}, {s(SA,4)}, {s(T2)} offen offset:{1024*i+8}")
    a(f"{noh}:")
    if "nopf" not in OPT:
        pfl = a.label("pfl")
        a(f"""
        s_mov_b32 {s(T5)}, {s(sWAVE)}
        s_cmp_lg_u32 {s(sROLE)}, 1
        s_cbranch_scc1 {pfl}
        s_cmp_lg_u32 {s(sWAVE)}, 7
        s_cbranch_scc1 {nopf}
        s_mov_b32 {s(T5)}, 5
        {pfl}:
        s_cmp_eq_u32 {s(T5)}, 5
        s_cselect_b32 {s(SB)}, {s(PG)}, {s(PU)}
        s_cselect_b32 {s(SB+1)}, {s(PG+1)}, {s(PU+1)}
        s_movk_i32 {s(T2)}, 3456
        s_movk_i32 {s(T3)}, 128
        s_cmp_eq_u32 {s(T5)}, 7
        s_cselect_b32 {s(SB)}, {s(PDN)}, {s(SB)}
        s_cselect_b32 {s(SB+1)}, {s(PDN+1)}, {s(SB+1)}
        s_cselect_b32 {s(T2)}, 128, {s(T2)}
        s_cselect_b32 {s(T3)}, 81920, {s(T3)}
        s_mov_b32 {s(SB+2)}, {640*3456}
        s_mov_b32 {s(SB+3)}, 0x20000
        v_and_b32 {v(vt0)}, 3, {v(vlane)}
        v_lshl_add_u32 {v(vt0)}, {v(vt0)}, 3, {s(sXCD)}
        v_mul_lo_u32 {v(vt0)}, {v(vt0)}, {s(T3)}
        v_lshrrev_b32 {v(vt1)}, 2, {v(vlane)}
        s_mul_i32 {s(T4)}, {s(sSLOT)}, 20
        v_add_u32 {v(vt1)}, {s(T4)}, {v(vt1)}
        v_mul_lo_u32 {v(vt1)}, {v(vt1)}, {s(T2)}
        v_add_u32 {v(vt0)}, {v(vt0)}, {v(vt1)}
        s_lshl_b32 {s(T2)}, {s(T2)}, 4
        buffer_load_dword {v(PF)}, {v(vt0)}, {s(SB,4)}, 0 offen
        s_mov_b64 exec, 0xffff
        buffer_load_dword {v(PF+1)}, {v(vt0)}, {s(SB,4)}, {s(T2)} offen
        s_mov_b64 exec, -1
        s_add_u32 {s(T5)}, {s(T5)}, 1
        s_cmp_le_u32 {s(T5)}, {s(sWAVE)}
        s_cbranch_scc1 {pfl}
        """)
    a(f"{nopf}:")
    F = V.alloc(10, 2); D = V.alloc(10, 2); acc = V.alloc(); vmean = V.alloc(); vvar = V.alloc(); vt = V.alloc(); vsd = V.alloc()
    for i in range(5):
        a.unpack(F + 2*i, F + 2*i + 1, X + i)
    a(f"v_pk_add_f32 {v(D,2)}, {v(F,2)}, {v(F+2,2)}")
    a(f"v_pk_add_f32 {v(D+2,2)}, {v(F+4,2)}, {v(F+6,2)}")
    a(f"v_pk_add_f32 {v(D,2)}, {v(D,2)}, {v(F+8,2)}")
    a(f"v_pk_add_f32 {v(D,2)}, {v(D,2)}, {v(D+2,2)}")
    a(f"v_add_f32 {v(acc)}, {v(D)}, {v(D+1)}")
    a.wave_sum([acc])
    a(f"v_readlane_b32 {s(T2)}, {v(acc)}, 63\ns_nop 1\nv_mov_b32 {v(vmean)}, {s(T2)}\nv_mul_f32 {v(vmean)}, {INV640}, {v(vmean)}")
    for i in range(10):
        a(f"v_sub_f32 {v(D+i)}, {v(F+i)}, {v(vmean)}")
    a(f"v_mul_f32 {v(acc)}, {v(D)}, {v(D)}\nv_mul_f32 {v(vt)}, {v(D+1)}, {v(D+1)}")
    for i in range(2, 10, 2):
        a(f"v_fmac_f32 {v(acc)}, {v(D+i)}, {v(D+i)}\nv_fmac_f32 {v(vt)}, {v(D+i+1)}, {v(D+i+1)}")
    a(f"v_add_f32 {v(acc)}, {v(acc)}, {v(vt)}")
    a.wave_sum([acc])
    a(f"""
    v_readlane_b32 {s(T2)}, {v(acc)}, 63
    s_nop 1
    v_mov_b32 {v(vvar)}, {s(T2)}
    v_mul_f32 {v(vvar)}, {INV640}, {v(vvar)}
    v_cvt_pk_bf16_f32 {v(vt)}, {v(vmean)}, {v(vvar)}
    v_lshlrev_b32 {v(vmean)}, 16, {v(vt)}
    v_and_b32 {v(vvar)}, 0xffff0000, {v(vt)}
    v_add_f32 {v(vvar)}, {EPS}, {v(vvar)}
    v_cvt_pk_bf16_f32 {v(vt)}, {v(vvar)}, {v(vvar)}
    v_lshlrev_b32 {v(vvar)}, 16, {v(vt)}
    v_sqrt_f32 {v(vvar)}, {v(vvar)}
    s_nop 0
    v_cvt_pk_bf16_f32 {v(vsd)}, {v(vmean)}, {v(vvar)}
    v_and_b32 {v(vvar)}, 0xffff0000, {v(vsd)}
    v_rcp_f32 {v(vvar)}, {v(vvar)}
    """)
    for i in range(10):
        a(f"v_sub_f32 {v(D+i)}, {v(F+i)}, {v(vmean)}")
    for i in range(5):
        a(f"v_cvt_pk_bf16_f32 {v(X+i)}, {v(D+2*i)}, {v(D+2*i+1)}")
    for i in range(5):
        a.unpack(D + 2*i, D + 2*i + 1, X + i)
    for i in range(10):
        a(f"v_mul_f32 {v(D+i)}, {v(D+i)}, {v(vvar)}")
    for i in range(5):
        a(f"v_cvt_pk_bf16_f32 {v(X+i)}, {v(D+2*i)}, {v(D+2*i+1)}")
    for i in range(5):
        a.unpack(D + 2*i, D + 2*i + 1, X + i)
        a.unpack(F + 2*i, F + 2*i + 1, W + i)
    a(f"v_mul_f32 {v(acc)}, {v(D)}, {v(F)}\nv_mul_f32 {v(vt)}, {v(D+1)}, {v(F+1)}")
    for i in range(2, 10, 2):
        a(f"v_fmac_f32 {v(acc)}, {v(D+i)}, {v(F+i)}\nv_fmac_f32 {v(vt)}, {v(D+i+1)}, {v(F+i+1)}")
    a(f"v_add_f32 {v(acc)}, {v(acc)}, {v(vt)}")
    a.wave_sum([acc])
    a(f"""
    v_cvt_pk_bf16_f32 {v(vt)}, {v(acc)}, {v(acc)}
    v_and_b32 {v(vt)}, 0xffff0000, {v(vt)}
    v_ashrrev_i32 {v(acc)}, 31, {v(vt)}
    v_or_b32 {v(acc)}, 0x80000000, {v(acc)}
    v_xor_b32 {v(vt)}, {v(vt)}, {v(acc)}
    v_and_b32 {v(vt)}, 0xffff0000, {v(vt)}
    s_sub_u32 {s(T2)}, 0xffff, {s(sROW)}
    v_or_b32 {v(vt)}, {s(T2)}, {v(vt)}
    s_lshl_b32 {s(T4)}, {s(sWAVE)}, 2
    s_add_u32 {s(T3)}, {s(T4)}, {KB}
    s_lshl_b32 {s(T4)}, {s(T4)}, 1
    s_add_u32 {s(T4)}, {s(T4)}, {STB}
    v_mov_b32 {v(vt0)}, {s(T3)}
    v_mov_b32 {v(vt1)}, {s(T4)}
    s_mov_b32 exec_lo, 0
    s_mov_b32 exec_hi, 0x80000000
    ds_write2_b32 {v(vt0)}, {v(vt)}, {v(vsd)} offset0:0 offset1:8
    ds_write2_b32 {v(vt1)}, {v(vmean)}, {v(vvar)} offset0:0 offset1:1
    s_mov_b64 exec, -1
    s_waitcnt lgkmcnt(0)
    s_barrier
    """)
    a.stamp(6)
    nokey = a.label("nokey")
    k1, k2, o1, o2 = F, F+1, F+2, F+3
    G4 = D if D % 4 == 0 else D + 2
    a(f"""
    s_cmp_lg_u32 {s(sWAVE)}, 4
    s_cbranch_scc1 {nokey}
    v_and_b32 {v(vt0)}, 7, {v(vlane)}
    v_lshlrev_b32 {v(vt0)}, 2, {v(vt0)}
    v_add_u32 {v(vt0)}, {KB}, {v(vt0)}
    ds_read_b32 {v(k1)}, {v(vt0)}
    v_mul_u32_u24 {v(vt1)}, 12, {v(vlane)}
    v_add_u32 {v(vt1)}, {KB+32-12}, {v(vt1)}
    s_mov_b64 exec, 0xf
    ds_read2_b32 {v(G4,2)}, {v(vt1)} offset0:0 offset1:1
    ds_read_b32 {v(G4+2)}, {v(vt1)} offset:8
    s_mov_b64 exec, -1
    v_mov_b32 {v(k2)}, 0
    v_mov_b32 {v(G4+3)}, {s(sTAG)}
    s_lshl_b32 {s(T2)}, {s(sW)}, 6
    s_add_u32 {s(T2)}, {s(T2)}, {KEY_OFF}
    s_waitcnt lgkmcnt(0)
    """)
    top2_dpp(a, k1, k2, o1, o2, vt0, DPP6[:3])
    a(f"""
    s_nop 0
    v_readlane_b32 {s(T4)}, {v(k1)}, 7
    v_readlane_b32 {s(T5)}, {v(k2)}, 7
    s_nop 1
    v_writelane_b32 {v(G4)}, {s(T4)}, 0
    v_writelane_b32 {v(G4+1)}, {s(T5)}, 0
    s_mov_b64 exec, 0xf
    buffer_store_dwordx4 {v(G4,4)}, {v(vq)}, {s(SWS,4)}, {s(T2)} offen sc1
    s_mov_b64 exec, -1
    {nokey}:
    s_cmp_eq_u32 {s(sROLE)}, 1
    s_cbranch_scc1 {moe}
    s_cmp_eq_u32 {s(sROLE)}, 0
    s_cbranch_scc1 L_conv
    s_cmp_lt_u32 {s(sWAVE)}, 3
    s_cbranch_scc1 {done}
    s_branch {P3pre}
    """)
    a("L_conv:")
    b3 = a.label("b3"); nofill = a.label("nofill"); dog = a.label("dog")
    a(f"s_cmp_lt_u32 {s(sWAVE)}, 4\ns_cbranch_scc1 {dog}\ns_cmp_eq_u32 {s(sWAVE)}, 4\ns_cbranch_scc1 {nofill}")
    npf = 0 if "nopf" in OPT else 2
    a(f"s_sub_u32 {s(T2)}, {s(sWAVE)}, 5\ns_mul_i32 {s(T2)}, {s(T2)}, {HCH}\nv_add_u32 {v(vt0)}, {s(T2)}, {v(vq)}")
    for i in range(4):
        a(f"s_waitcnt vmcnt({9-3*i+npf})")
        for d in range(4):
            a(f"v_alignbit_b32 {v(HC+4*i+d)}, {v(HC+4*i+d)}, {v(HBb+4*i+d)}, 16")
            a(f"v_alignbit_b32 {v(HO+4*(i&1)+d)}, {v(HBb+4*i+d)}, {v(HA+4*i+d)}, 16")
        o = 32 + 1024 * i
        if i == 0:
            a(f"""
            v_readfirstlane_b32 {s(T4)}, {v(HA)}
            v_readfirstlane_b32 {s(T5)}, {v(HA+1)}
            v_lshrrev_b32 {v(vt1)}, 2, {v(vlane)}
            v_lshlrev_b32 {v(vt2)}, 4, {v(vt1)}
            v_sub_u32 {v(vt2)}, 64, {v(vt2)}
            v_lshlrev_b64 {v(PF+2,2)}, {v(vt2)}, {s(T4,2)}
            v_mul_u32_u24 {v(vt1)}, {HCOPY}, {v(vt1)}
            v_and_b32 {v(vt2)}, 3, {v(vlane)}
            v_lshl_add_u32 {v(vt1)}, {v(vt2)}, 3, {v(vt1)}
            v_add_u32 {v(vt1)}, {s(T2)}, {v(vt1)}
            s_mov_b64 exec, 0x777f
            v_mov_b32 {v(PF+2)}, 0
            v_mov_b32 {v(PF+3)}, 0
            s_mov_b64 exec, 0xffff
            ds_write_b64 {v(vt1)}, {v(PF+2,2)}
            s_mov_b64 exec, -1
            """)
        a(f"ds_write_b128 {v(vt0)}, {v(HA+4*i,4)} offset:{o}")
        a(f"ds_write_b128 {v(vt0)}, {v(HO+4*(i&1),4)} offset:{o+HCOPY}")
        a(f"ds_write_b128 {v(vt0)}, {v(HBb+4*i,4)} offset:{o+2*HCOPY}")
        a(f"ds_write_b128 {v(vt0)}, {v(HC+4*i,4)} offset:{o+3*HCOPY}")
        if i == 1: a("s_waitcnt lgkmcnt(0)")
    a.stamp(7)
    a(f"s_branch {b3}")
    a(f"{nofill}:")
    Z = 104
    a(f"""
    v_mov_b64 {v(Z,2)}, 0
    v_mov_b64 {v(Z+2,2)}, 0
    ds_write_b128 {v(vq)}, {v(Z,4)} offset:{UB}
    v_lshlrev_b32 {v(vt0)}, 3, {v(vlane)}
    ds_write_b64 {v(vt0)}, {v(Z,2)} offset:{UB+1024}
    {b3}:
    s_waitcnt lgkmcnt(0)
    s_barrier
    s_mov_b32 {s(sROLE)}, 3
    s_branch {P3pre}
    """)
    a(f"{dog}:")
    V = Regs("v", 5, 200)
    vA = V.alloc(); vB = V.alloc(); vm = V.alloc(); vq_ = V.alloc(); vD = V.alloc(); vU = V.alloc(); GA = V.alloc()
    ACC = V.alloc(32, 4)
    FA = [V.alloc(32, 4), V.alloc(32, 4)]
    FB = [V.alloc(32, 4), V.alloc(32, 4)]
    G = FB[1]
    a.srd(SA, PD, 1280)
    sCH, sJ0, sAS, sBS, sIT = T0, T1, T2, T3, T4
    a(f"""
    v_lshrrev_b32 {v(vt0)}, 2, v0
    v_mul_u32_u24 {v(GA)}, {TBS}, {v(vt0)}
    v_and_b32 {v(vt0)}, 3, v0
    v_lshl_add_u32 {v(GA)}, {v(vt0)}, 4, {v(GA)}
    s_lshl_b32 {s(T5)}, {s(sCI)}, 6
    v_add_u32 {v(GA)}, {s(T5)}, {v(GA)}
    s_movk_i32 {s(sAS)}, 128
    s_cmp_eq_u32 {s(sWAVE)}, 3
    s_cselect_b32 {s(sCH)}, 0, {s(sWAVE)}
    s_cselect_b32 {s(sJ0)}, 6, 0
    s_cselect_b32 {s(sAS)}, {HCH}, {s(sAS)}
    s_cselect_b32 {s(sBS)}, 16, -384
    v_and_b32 {v(vm)}, 15, {v(vlane)}
    v_lshrrev_b32 {v(vq_)}, 4, {v(vlane)}
    s_add_u32 {s(T5)}, {s(sC0)}, {s(sCH)}
    s_lshl_b32 {s(T5)}, {s(T5)}, 1
    v_mov_b32 {v(vt1)}, {s(T5)}
    buffer_load_ushort {v(vD)}, {v(vt1)}, {s(SA,4)}, 0 offen
    v_lshlrev_b32 {v(vt1)}, 3, {v(vq_)}
    v_sub_u32 {v(vt1)}, {v(vm)}, {v(vt1)}
    v_add_u32 {v(vt1)}, 25, {v(vt1)}
    v_and_b32 {v(vt2)}, 3, {v(vt1)}
    v_sub_u32 {v(vt1)}, {v(vt1)}, {v(vt2)}
    v_mul_u32_u24 {v(vt2)}, {HCOPY}, {v(vt2)}
    v_lshl_add_u32 {v(vA)}, {v(vt1)}, 1, {v(vt2)}
    s_mul_i32 {s(T5)}, {s(sCH)}, {HCH}
    s_lshl_b32 {s(T6)}, {s(sJ0)}, 6
    s_add_u32 {s(T5)}, {s(T5)}, {s(T6)}
    v_add_u32 {v(vA)}, {s(T5)}, {v(vA)}
    v_lshl_add_u32 {v(vt1)}, {v(vm)}, 1, {v(vq_)}
    v_mul_u32_u24 {v(vB)}, 48, {v(vt1)}
    s_lshl_b32 {s(T5)}, {s(sCH)}, 4
    s_add_u32 {s(T5)}, {s(T5)}, {UB + 48*30 - 192}
    s_mul_i32 {s(T6)}, {s(sJ0)}, 192
    s_sub_u32 {s(T5)}, {s(T5)}, {s(T6)}
    v_add_u32 {v(vB)}, {s(T5)}, {v(vB)}
    v_lshrrev_b32 {v(vt1)}, 1, {v(vq_)}
    v_lshl_add_u32 {v(vt1)}, {v(vm)}, 1, {v(vt1)}
    v_and_b32 {v(vt2)}, 1, {v(vq_)}
    v_mul_u32_u24 {v(vU)}, 48, {v(vt1)}
    v_lshlrev_b32 {v(vt2)}, 3, {v(vt2)}
    v_sub_u32 {v(vU)}, {v(vU)}, {v(vt2)}
    s_lshl_b32 {s(T5)}, {s(sCH)}, 4
    s_add_u32 {s(T5)}, {s(T5)}, {UB + 48*32 + 8}
    v_add_u32 {v(vU)}, {s(T5)}, {v(vU)}
    v_mul_u32_u24 {v(vt0)}, 12, v0
    v_add_u32 {v(vt0)}, {UB+1536}, {v(vt0)}
    """)
    for i in range(16):
        a(f"v_mov_b64 {v(ACC+2*i,2)}, 0")
    a.stamp(7)
    poll(a, [f"s_mov_b32 {s(T5)}, {U_OFF + 64*TBS*i}\nbuffer_load_dwordx4 {v(G+4*i,4)}, {v(GA)}, {s(SWS,4)}, {s(T5)} offen sc1" for i in range(4)],
         [G+4*i+3 for i in range(4)])
    a.stamp(8)
    for i in range(4):
        a(f"ds_write2_b32 {v(vt0)}, {v(G+4*i)}, {v(G+4*i+1)} offset0:0 offset1:1")
        a(f"ds_write_b32 {v(vt0)}, {v(G+4*i+2)} offset:8")
        if i < 3: a(f"v_add_u32 {v(vt0)}, 3072, {v(vt0)}")
    a("s_waitcnt lgkmcnt(0)\ns_barrier")
    a.stamp(9)
    def frag_loads(st, second):
        L = []
        ao = 64 if second else 0
        bo = 0 if second else 192
        for n in range(8):
            L.append(f"ds_read_b64 {v(FA[st]+4*n,2)}, {v(vA)} offset:{ao+512*n}")
            L.append(f"ds_read_b64 {v(FA[st]+4*n+2,2)}, {v(vA)} offset:{ao+512*n+8}")
            L.append(f"ds_read_b128 {v(FB[st]+4*n,4)}, {v(vB)} offset:{bo+1536*n}")
        return L
    for l in frag_loads(0, False): a(l)
    a(f"s_mov_b32 {s(sIT)}, 0")
    loop = a.label("loop")
    a(f"{loop}:")
    order = mfma_order()
    def unit(st, loads, pre=None):
        a("s_waitcnt lgkmcnt(0)")
        if pre: a(pre)
        li = 0
        for k, (x, y) in enumerate(order):
            a(f"v_mfma_f32_16x16x32_bf16 {v(ACC+4*(x+y),4)}, {v(FA[st]+4*x,4)}, {v(FB[st]+4*y,4)}, {v(ACC+4*(x+y),4)}")
            if li < len(loads):
                a(loads[li]); li += 1
    unit(0, frag_loads(1, True))
    unit(1, frag_loads(0, False), pre=f"v_add_u32 {v(vA)}, {s(sAS)}, {v(vA)}\nv_add_u32 {v(vB)}, {s(sBS)}, {v(vB)}")
    noflush = a.label("noflush")
    a(f"""
    s_cmp_lg_u32 {s(sWAVE)}, 3
    s_cbranch_scc1 {noflush}
    s_lshl_b32 {s(T5)}, {s(sIT)}, 13
    s_add_u32 {s(T5)}, {s(T5)}, {RB}
    v_lshl_add_u32 {v(vt0)}, {v(vlane)}, 4, {s(T5)}
    s_nop 7
    """)
    for t in range(8):
        a(f"ds_write_b128 {v(vt0)}, {v(ACC+4*t,4)} offset:{1024*t}")
    a("s_waitcnt lgkmcnt(0)")
    for i in range(16):
        a(f"v_mov_b64 {v(ACC+2*i,2)}, 0")
    a(f"""
    {noflush}:
    s_add_u32 {s(sIT)}, {s(sIT)}, 1
    s_cmp_lt_u32 {s(sIT)}, 3
    s_cbranch_scc1 {loop}
    """)
    a.stamp(10)
    P = FA[0]; UU = FB[0]; UD = FA[1]; T = FB[1]
    a(f"s_waitcnt lgkmcnt(0)\ns_cmp_eq_u32 {s(sWAVE)}, 3\ns_cbranch_scc1 {bmjoin}")
    for t in range(8):
        a(f"ds_read_b64 {v(UU+2*t,2)}, {v(vU)} offset:{1536*t}")
    a(f"""
    s_lshl_b32 {s(T5)}, {s(sWAVE)}, 13
    s_add_u32 {s(T5)}, {s(T5)}, {RB}
    v_lshl_add_u32 {v(vt0)}, {v(vlane)}, 4, {s(T5)}
    v_lshlrev_b32 {v(vD)}, 16, {v(vD)}
    v_xor_b32 {v(vU)}, 8, {v(vU)}
    s_waitcnt lgkmcnt(0)
    """)
    for t in range(8):
        U0 = UD + 4*t
        a.unpack(U0+3, U0+2, UU+2*t)
        a.unpack(U0+1, U0+0, UU+2*t+1)
        for r in range(4):
            a(f"v_mul_f32 {v(U0+r)}, {v(U0+r)}, {v(vD)}")
        rnd2(a, U0, U0+1, T); rnd2(a, U0+2, U0+3, T+1)
    a("s_barrier")
    a.stamp(11)
    for t in range(8):
        a(f"ds_read_b128 {v(P+4*t,4)}, {v(vt0)} offset:{1024*t}")
    for t in range(8):
        A0 = ACC + 4*t; U0 = UD + 4*t
        a(f"s_waitcnt lgkmcnt(7)" if not a.stamps else "s_waitcnt lgkmcnt(0)")
        a(f"v_pk_add_f32 {v(A0,2)}, {v(A0,2)}, {v(P+4*t,2)}")
        a(f"v_pk_add_f32 {v(A0+2,2)}, {v(A0+2,2)}, {v(P+4*t+2,2)}")
        rnd2(a, A0, A0+1, T); rnd2(a, A0+2, A0+3, T+1)
        a(f"v_pk_add_f32 {v(A0,2)}, {v(A0,2)}, {v(U0,2)}")
        a(f"v_pk_add_f32 {v(A0+2,2)}, {v(A0+2,2)}, {v(U0+2,2)}")
        a(f"v_cvt_pk_bf16_f32 {v(P+4*t)}, {v(A0)}, {v(A0+1)}")
        a(f"v_cvt_pk_bf16_f32 {v(P+4*t+1)}, {v(A0+2)}, {v(A0+3)}")
        a(f"ds_write_b64 {v(vU)}, {v(P+4*t,2)} offset:{1536*t}")
    a(f"s_branch {b4join}")
    a(f"{bmjoin}:\ns_barrier")
    a(f"{b4join}:")
    PUBR = 8
    a(f"""
    v_mul_u32_u24 {v(vt0)}, 12, v0
    v_add_u32 {v(vt0)}, {UB+1536}, {v(vt0)}
    v_add_u32 {v(vt2)}, 6144, {v(vt0)}
    v_lshrrev_b32 {v(5)}, 2, v0
    v_mul_u32_u24 {v(vt1)}, {TBS}, {v(5)}
    v_and_b32 {v(5)}, 3, v0
    v_lshl_add_u32 {v(vt1)}, {v(5)}, 4, {v(vt1)}
    s_lshl_b32 {s(T2)}, {s(sCI)}, 6
    s_add_u32 {s(T2)}, {s(T2)}, {Y_OFF}
    s_add_u32 {s(T3)}, {s(T2)}, {128*TBS}
    v_mov_b32 {v(PUBR+3)}, {s(sTAG)}
    v_mov_b32 {v(PUBR+7)}, {s(sTAG)}
    s_waitcnt lgkmcnt(0)
    s_barrier
    ds_read2_b32 {v(PUBR,2)}, {v(vt0)} offset0:0 offset1:1
    ds_read_b32 {v(PUBR+2)}, {v(vt0)} offset:8
    ds_read2_b32 {v(PUBR+4,2)}, {v(vt2)} offset0:0 offset1:1
    ds_read_b32 {v(PUBR+6)}, {v(vt2)} offset:8
    s_waitcnt lgkmcnt(2)
    buffer_store_dwordx4 {v(PUBR,4)}, {v(vt1)}, {s(SWS,4)}, {s(T2)} offen sc1
    s_waitcnt lgkmcnt(0)
    buffer_store_dwordx4 {v(PUBR+4,4)}, {v(vt1)}, {s(SWS,4)}, {s(T3)} offen sc1
    """)
    a.stamp(12)
    a(f"""
    s_cmp_lt_u32 {s(sWAVE)}, 3
    s_cbranch_scc1 {done}
    s_cmp_gt_u32 {s(sWAVE)}, 3
    s_cbranch_scc1 {P3poll}
    """)
    a(f"{P3pre}:")
    V = Regs("v", 16, 160)
    voff = V.alloc(); vtop = V.alloc(); vst = V.alloc(); vy = V.alloc(3); vl = V.alloc(3)
    X = V.alloc(8); STv = V.alloc(16, 4); XF = V.alloc(16, 2); XN = V.alloc(16, 2); YG = V.alloc(12, 4); TOP = V.alloc(4, 4); Y = V.alloc(8, 4); YF = V.alloc(2, 2); T = V.alloc()
    a(f"""
    v_subrev_u32 {v(vt0)}, 192, v0
    v_lshl_add_u32 {v(voff)}, {v(vt0)}, 2, s3
    s_movk_i32 {s(T1)}, 5120
    """)
    for r in range(8):
        a(f"buffer_load_dword {v(X+r)}, {v(voff)}, {s(SQ,4)}, {'0' if r<4 else s(T1)} offen offset:{1280*(r%4)}")
    a(f"""
    v_mov_b32 {v(vt1)}, {STB}
    ds_read_b128 {v(STv,4)}, {v(vt1)}
    ds_read_b128 {v(STv+4,4)}, {v(vt1)} offset:16
    ds_read_b128 {v(STv+8,4)}, {v(vt1)} offset:32
    ds_read_b128 {v(STv+12,4)}, {v(vt1)} offset:48
    v_lshlrev_b32 {v(vst)}, 5, {v(vt0)}
    v_add_u32 {v(vst)}, {RB}, {v(vst)}
    s_sub_u32 {s(T2)}, {s(sWAVE)}, 3
    s_mul_i32 {s(T2)}, {s(T2)}, 43691
    s_lshr_b32 {s(T2)}, {s(T2)}, 8
    s_add_u32 {s(T3)}, {s(T2)}, 171
    s_mul_i32 {s(T4)}, {s(sW)}, {TBS}
    s_add_u32 {s(T4)}, {s(T4)}, {Y_OFF}
    """)
    for i in range(3):
        a(f"""
        v_add_u32 {v(vt1)}, {s(T2)}, {v(vlane)}
        v_min_u32 {v(vt1)}, {s(T3)}, {v(vt1)}
        v_lshl_add_u32 {v(vy+i)}, {v(vt1)}, 4, {s(T4)}
        v_mul_u32_u24 {v(vl+i)}, 12, {v(vt1)}
        v_add_u32 {v(vl+i)}, {RB}, {v(vl+i)}
        s_add_u32 {s(T2)}, {s(T2)}, 64
        """)
    a(f"""
    s_lshl_b32 {s(T2)}, {s(sXCD)}, 7
    s_add_u32 {s(T2)}, {s(T2)}, {TOP_OFF}
    v_mov_b32 {v(vtop)}, {s(T2)}
    s_waitcnt vmcnt(0) lgkmcnt(0)
    """)
    for r in range(8):
        xf, xn = XF + 2*r, XN + 2*r
        a.unpack(xf, xf+1, X+r)
        a(f"v_sub_f32 {v(xn)}, {v(xf)}, {v(STv+2*r)}\nv_sub_f32 {v(xn+1)}, {v(xf+1)}, {v(STv+2*r)}")
        rnd2(a, xn, xn+1, T)
        a(f"v_mul_f32 {v(xn)}, {v(xn)}, {v(STv+2*r+1)}\nv_mul_f32 {v(xn+1)}, {v(xn+1)}, {v(STv+2*r+1)}")
        rnd2(a, xn, xn+1, T)
    a(f"s_cmp_eq_u32 {s(sROLE)}, 3\ns_cbranch_scc1 {bmjoin}")
    nt = a.label("nt")
    a(f"s_cmp_eq_u32 {s(sROLE)}, 0\ns_cbranch_scc1 {P3poll}")
    poll(a, [f"buffer_load_dwordx4 {v(YG,4)}, {v(vy)}, {s(SWS,4)}, 0 offen sc1"], [YG+3], sleep=8)
    a(f"{P3poll}:")
    a.srd(SA, PO, QSZ)
    a(f"s_movk_i32 {s(T1)}, 5120")
    poll(a, [f"buffer_load_dwordx4 {v(YG+4*i,4)}, {v(vy+i)}, {s(SWS,4)}, 0 offen sc1" for i in range(3)] +
            [f"buffer_load_dwordx4 {v(TOP,4)}, {v(vtop)}, {s(SWS,4)}, 0 offen sc1"],
         [YG+4*i+3 for i in range(3)] + [TOP+3], sleep=1)
    a.stamp(10)
    for i in range(3):
        a(f"ds_write2_b32 {v(vl+i)}, {v(YG+4*i)}, {v(YG+4*i+1)} offset0:0 offset1:1")
        a(f"ds_write_b32 {v(vl+i)}, {v(YG+4*i+2)} offset:8")
    a(f"""
    v_readfirstlane_b32 {s(T2)}, {v(TOP)}
    v_readfirstlane_b32 {s(T3)}, {v(TOP+1)}
    s_waitcnt lgkmcnt(0)
    ds_read_b128 {v(Y,4)}, {v(vst)}
    ds_read_b128 {v(Y+4,4)}, {v(vst)} offset:16
    s_lshl_b32 {s(T4)}, {s(sW)}, 3
    s_andn2_b32 {s(T2)}, 0xffff, {s(T2)}
    s_andn2_b32 {s(T3)}, 0xffff, {s(T3)}
    s_sub_u32 {s(T2)}, {s(T2)}, {s(T4)}
    s_sub_u32 {s(T3)}, {s(T3)}, {s(T4)}
    s_waitcnt lgkmcnt(0)
    """)
    for r in range(8):
        xf, xn = XF + 2*r, XN + 2*r
        y0, y1 = Y + r//2, Y + 4 + r//2
        if r % 2 == 0:
            a(f"v_lshlrev_b32 {v(YF)}, 16, {v(y0)}\nv_lshlrev_b32 {v(YF+1)}, 16, {v(y1)}")
        else:
            a(f"v_and_b32 {v(YF)}, 0xffff0000, {v(y0)}\nv_and_b32 {v(YF+1)}, 0xffff0000, {v(y1)}")
        a(f"v_pk_mul_f32 {v(YF,2)}, {v(YF,2)}, {v(xn,2)}")
        rnd2(a, YF, YF+1, T)
        a(f"v_pk_add_f32 {v(YF,2)}, {v(YF,2)}, {v(xf,2)}")
        rnd2(a, YF, YF+1, T)
        a(f"v_pk_add_f32 {v(YF,2)}, {v(YF,2)}, {v(xn,2)}")
        a(f"v_cvt_pk_bf16_f32 {v(X+r)}, {v(YF)}, {v(YF+1)}")
        sk = a.label("skip")
        a(f"s_cmp_eq_u32 {s(T2)}, {r}\ns_cbranch_scc1 {sk}\ns_cmp_eq_u32 {s(T3)}, {r}\ns_cbranch_scc1 {sk}")
        a(f"buffer_store_dword {v(X+r)}, {v(voff)}, {s(SA,4)}, {'0' if r<4 else s(T1)} offen offset:{1280*(r%4)}")
        a(f"{sk}:")
    a(f"s_branch {done}")

    a(f"{moe}:")
    mk = a.label("mkeys"); mb2 = a.label("mb2")
    a(f"s_cmp_ge_u32 {s(sWAVE)}, 5\ns_cbranch_scc1 {mk}")
    VA = 240
    a(f"""
    v_lshrrev_b32 {v(vt0)}, 4, {v(vlane)}
    v_lshlrev_b32 {v(vt0)}, 3, {v(vt0)}
    s_lshl_b32 {s(T2)}, {s(sWAVE)}, 7
    v_add_u32 {v(vt0)}, {s(T2)}, {v(vt0)}
    v_mul_u32_u24 {v(vt0)}, 3456, {v(vt0)}
    v_and_b32 {v(vt1)}, 7, {v(vlane)}
    v_lshl_add_u32 {v(vt0)}, {v(vt1)}, 4, {v(vt0)}
    s_lshl_b32 {s(T2)}, {s(sCI)}, 7
    v_add_u32 {v(vt0)}, {s(T2)}, {v(vt0)}
    v_and_b32 {v(vt1)}, 8, {v(vlane)}
    v_cmp_ne_u32 vcc, 0, {v(vt1)}
    v_mov_b32 {v(VA)}, {s(PG)}
    v_mov_b32 {v(VA+1)}, {s(PG+1)}
    v_mov_b32 {v(vt1)}, {s(PU)}
    v_mov_b32 {v(vt2)}, {s(PU+1)}
    v_cndmask_b32 {v(VA)}, {v(VA)}, {v(vt1)}, vcc
    v_cndmask_b32 {v(VA+1)}, {v(VA+1)}, {v(vt2)}, vcc
    v_add_co_u32 {v(VA)}, vcc, {v(VA)}, {v(vt0)}
    s_nop 1
    v_addc_co_u32 {v(VA+1)}, vcc, 0, {v(VA+1)}, vcc
    s_mov_b32 {s(T2)}, {2*3456}
    s_mov_b32 {s(T3)}, 0
    s_mov_b32 {s(T4)}, {26*3456}
    s_mov_b32 {s(T5)}, 0
    """)
    for kk in range(4):
        for i in range(0, 8, 2):
            a(f"global_load_dwordx4 {v(WB+32*kk+4*i,4)}, {v(VA,2)}, off")
            a(f"global_load_dwordx4 {v(WB+32*kk+4*i+4,4)}, {v(VA,2)}, off offset:3456")
            if not (kk == 3 and i == 6):
                a(f"v_lshl_add_u64 {v(VA,2)}, {v(VA,2)}, 0, {s(T4 if i == 6 else T2,2)}")
    DB, SP = 8, 72
    vm, vq_ = 5, 6
    a.srd(SA, PDN, 1728 * 1280)
    a(f"""
    v_and_b32 {v(vm)}, 15, {v(vlane)}
    v_lshrrev_b32 {v(vq_)}, 4, {v(vlane)}
    v_mul_u32_u24 {v(vt0)}, 10240, {v(vq_)}
    v_lshl_add_u32 {v(vt0)}, {v(vm)}, 4, {v(vt0)}
    s_mul_i32 {s(T2)}, {s(sCI)}, 81920
    s_lshl_b32 {s(T3)}, {s(sWAVE)}, 8
    s_add_u32 {s(T2)}, {s(T2)}, {s(T3)}
    """)
    for st in range(2):
        for i in range(8):
            a(f"buffer_load_dwordx4 {v(DB+32*st+4*i,4)}, {v(vt0)}, {s(SA,4)}, {s(T2)} offen offset:{1280*(i%4)}")
            if i % 4 == 3: a(f"s_add_u32 {s(T2)}, {s(T2)}, {5120 if i == 3 else 40960-5120}")
    a(f"s_mov_b32 {s(T2)}, 0x05040100\ns_mov_b32 {s(T3)}, 0x07060302")
    def perm_unit(dst, src):
        for d in range(4):
            for j in range(4):
                a(f"v_perm_b32 {v(dst+8*d+j)}, {v(src+8*j+4+d)}, {v(src+8*j+d)}, {s(T2)}")
                a(f"v_perm_b32 {v(dst+8*d+4+j)}, {v(src+8*j+4+d)}, {v(src+8*j+d)}, {s(T3)}")
    blocks = [SP, WB, WB+32, WB+64]
    for kk in range(4):
        a(f"s_waitcnt vmcnt({16 + 8*(3-kk)})")
        perm_unit(blocks[kk], WB + 32*kk)
    a.stamp(7)
    ACC = WB + 96
    AF = 232
    a(f"""
    v_and_b32 {v(vt0)}, 1, {v(vm)}
    v_mul_u32_u24 {v(vt1)}, 1280, {v(vt0)}
    v_lshl_add_u32 {v(vt1)}, {v(vq_)}, 4, {v(vt1)}
    s_lshl_b32 {s(T4)}, {s(sWAVE)}, 8
    v_add_u32 {v(vt1)}, {s(T4)}, {v(vt1)}
    v_lshlrev_b32 {v(vt0)}, 7, {v(vt0)}
    v_lshl_add_u32 {v(7)}, {v(vq_)}, 4, {v(vt0)}
    s_lshl_b32 {s(T4)}, {s(sWAVE)}, 10
    v_lshl_add_u32 {v(vt2)}, {v(vm)}, 6, {s(T4)}
    s_waitcnt lgkmcnt(0)
    s_barrier
    """)
    a.stamp(8)
    for kk in range(4):
        a(f"ds_read_b128 {v(AF+4*kk,4)}, {v(vt1)} offset:{XS+64*kk}")
    for kk in range(4):
        a(f"s_waitcnt lgkmcnt({3-kk})" if not a.stamps else "s_waitcnt lgkmcnt(0)")
        for c in range(8):
            a(f"v_mfma_f32_16x16x32_bf16 {v(ACC+4*c,4)}, {v(AF+4*kk,4)}, {v(blocks[kk]+4*c,4)}, {'0' if kk == 0 else v(ACC+4*c,4)}")
    a(f"s_mov_b64 exec, 0xffff\ns_nop 6")
    for c in range(8):
        a(f"ds_write_b64 {v(vt2)}, {v(ACC+4*c,2)} offset:{RED+8*c}")
    a(f"s_mov_b64 exec, -1\ns_waitcnt lgkmcnt(0)\ns_barrier")
    a.stamp(9)
    a("s_waitcnt vmcnt(8)")
    perm_unit(SP, DB)
    a("s_waitcnt vmcnt(0)")
    perm_unit(WB, DB + 32)
    a("s_barrier")
    a.stamp(11)
    a(f"ds_read_b128 {v(AF,4)}, {v(7)} offset:{HS}\nds_read_b128 {v(AF+4,4)}, {v(7)} offset:{HS+64}")
    a(f"""
    s_mul_i32 {s(T4)}, {s(sCI)}, 10240
    s_lshl_b32 {s(T5)}, {s(sWAVE)}, 11
    s_add_u32 {s(T4)}, {s(T4)}, {s(T5)}
    s_add_u32 {s(T4)}, {s(T4)}, {PART_OFF}
    v_lshlrev_b32 {v(vt0)}, 4, {v(vm)}
    s_waitcnt lgkmcnt(0)
    """)
    for st, blk in enumerate((SP, WB)):
        for c in range(8):
            a(f"v_mfma_f32_16x16x32_bf16 {v(ACC+4*c,4)}, {v(AF+4*st,4)}, {v(blk+4*c,4)}, {'0' if st == 0 else v(ACC+4*c,4)}")
    a(f"s_mov_b64 exec, 0xffff\ns_nop 0")
    for c in range(8):
        a(f"v_mov_b32 {v(ACC+4*c+2)}, {v(ACC+4*c+1)}\nv_mov_b32 {v(ACC+4*c+1)}, {s(sTAG)}\nv_mov_b32 {v(ACC+4*c+3)}, {s(sTAG)}")
        a(f"buffer_store_dwordx4 {v(ACC+4*c,4)}, {v(vt0)}, {s(SWS,4)}, {s(T4)} offen offset:{256*c} sc1")
    a.stamp(12)
    a(f"""
    s_mov_b64 exec, -1
    s_cmp_ge_u32 {s(sWAVE)}, 3
    s_cbranch_scc1 {P3pre}
    s_cmp_lg_u32 {s(sWAVE)}, 0
    s_cbranch_scc1 {done}
    s_cmp_ge_u32 {s(sCI)}, 20
    s_cbranch_scc1 {done}
    """)
    PB = 8; vkey = 64; vcol = 65; vx = 66; vxn = 67; vya = 68; vsel = 69; vsig = 70; vout = 71; YQ = 72; vidx = 76
    a.srd(SA, PO, QSZ)
    a(f"""
    v_and_b32 {v(vt0)}, 1, {v(vlane)}
    v_lshlrev_b32 {v(vt1)}, 2, {v(vt0)}
    ds_read_b32 {v(vkey)}, {v(vt1)} offset:{TK}
    v_lshrrev_b32 {v(vt2)}, 1, {v(vlane)}
    s_lshl_b32 {s(T2)}, {s(sCI)}, 5
    v_add_u32 {v(vt2)}, {s(T2)}, {v(vt2)}
    v_and_b32 {v(vcol)}, 0x380, {v(vt2)}
    v_and_b32 {v(vt1)}, 15, {v(vt2)}
    v_lshl_add_u32 {v(vcol)}, {v(vt1)}, 3, {v(vcol)}
    v_bfe_u32 {v(vt1)}, {v(vt2)}, 4, 3
    v_add_u32 {v(vcol)}, {v(vcol)}, {v(vt1)}
    v_mul_u32_u24 {v(vt1)}, 1280, {v(vt0)}
    v_lshl_add_u32 {v(vt1)}, {v(vcol)}, 1, {v(vt1)}
    ds_read_u16 {v(vxn)}, {v(vt1)} offset:{XS}
    s_waitcnt lgkmcnt(0)
    v_not_b32 {v(vidx)}, {v(vkey)}
    v_and_b32 {v(vidx)}, 0xffff, {v(vidx)}
    v_mul_u32_u24 {v(vout)}, 1280, {v(vidx)}
    v_lshl_add_u32 {v(vout)}, {v(vcol)}, 1, {v(vout)}
    buffer_load_ushort {v(vx)}, {v(vout)}, {s(SQ,4)}, 0 offen
    ; dense dword index dd = 4*col + ((idx&7)>>1) ; granule L = dd/3 ; sel = dd%3
    v_bfe_u32 {v(vt1)}, {v(vidx)}, 1, 2
    v_lshl_add_u32 {v(vt1)}, {v(vcol)}, 2, {v(vt1)}
    s_mov_b32 {s(T2)}, 0x55555556
    v_mul_hi_u32 {v(vt2)}, {v(vt1)}, {s(T2)}
    v_mul_u32_u24 {v(vsel)}, 3, {v(vt2)}
    v_sub_u32 {v(vsel)}, {v(vt1)}, {v(vsel)}
    v_lshrrev_b32 {v(vya)}, 3, {v(vidx)}
    v_mul_u32_u24 {v(vya)}, {TBS}, {v(vya)}
    v_lshl_add_u32 {v(vya)}, {v(vt2)}, 4, {v(vya)}
    v_add_u32 {v(vya)}, {Y_OFF}, {v(vya)}
    v_and_b32 {v(vsig)}, 0xffff0000, {v(vkey)}
    v_ashrrev_i32 {v(vt1)}, 31, {v(vsig)}
    v_not_b32 {v(vt1)}, {v(vt1)}
    v_or_b32 {v(vt1)}, 0x80000000, {v(vt1)}
    v_xor_b32 {v(vsig)}, {v(vsig)}, {v(vt1)}
    v_and_b32 {v(vsig)}, 0xffff0000, {v(vsig)}
    """)
    sigmoid(a, vsig)
    rnd1(a, vsig)
    a(f"""
    v_lshlrev_b32 {v(vxn)}, 16, {v(vxn)}
    s_lshl_b32 {s(T2)}, {s(sCI)}, 9
    s_add_u32 {s(T2)}, {s(T2)}, {PART_OFF}
    v_lshl_add_u32 {v(vt0)}, {v(vlane)}, 3, {s(T2)}
    """)
    ld = []
    for e in range(27):
        ld.append(f"s_mov_b32 {s(T3)}, {10240*e}\nbuffer_load_dwordx2 {v(PB+2*e,2)}, {v(vt0)}, {s(SWS,4)}, {s(T3)} offen sc1")
    poll(a, ld, [PB+2*e+1 for e in range(27)])
    a.stamp(10)
    for e in range(2, 27):
        a(f"v_add_f32 {v(PB+2*(e&1))}, {v(PB+2*(e&1))}, {v(PB+2*e)}")
    a(f"v_add_f32 {v(PB)}, {v(PB)}, {v(PB+2)}")
    rnd1(a, PB)
    a(f"v_mul_f32 {v(PB)}, {v(PB)}, {v(vsig)}")
    rnd1(a, PB)
    a(f"v_add_f32 {v(PB)}, {v(PB)}, {v(vxn)}")
    rnd1(a, PB)
    a(f"v_lshlrev_b32 {v(vx)}, 16, {v(vx)}")
    poll(a, [f"buffer_load_dwordx4 {v(YQ,4)}, {v(vya)}, {s(SWS,4)}, 0 offen sc1"], [YQ+3], sleep=2)
    a(f"""
    v_cmp_eq_u32 vcc, 1, {v(vsel)}
    v_cmp_eq_u32 {s(T4,2)}, 2, {v(vsel)}
    v_and_b32 {v(vt1)}, 1, {v(vidx)}
    v_lshlrev_b32 {v(vt1)}, 4, {v(vt1)}
    v_cndmask_b32 {v(YQ)}, {v(YQ)}, {v(YQ+1)}, vcc
    v_cndmask_b32 {v(YQ)}, {v(YQ)}, {v(YQ+2)}, {s(T4,2)}
    v_lshrrev_b32 {v(YQ)}, {v(vt1)}, {v(YQ)}
    v_lshlrev_b32 {v(YQ)}, 16, {v(YQ)}
    v_mul_f32 {v(YQ)}, {v(YQ)}, {v(vxn)}
    """)
    rnd1(a, YQ)
    a(f"v_add_f32 {v(YQ)}, {v(YQ)}, {v(vx)}")
    rnd1(a, YQ)
    a(f"""
    v_add_f32 {v(YQ)}, {v(YQ)}, {v(PB)}
    v_cvt_pk_bf16_f32 {v(YQ)}, {v(YQ)}, {v(YQ)}
    buffer_store_short {v(YQ)}, {v(vout)}, {s(SA,4)}, 0 offen
    s_branch {done}
    """)
    a(f"{mk}:")
    a(f"s_cmp_eq_u32 {s(sWAVE)}, 7\ns_cbranch_scc1 {mb2}")
    V = Regs("v", 5, 104)
    vq = V.alloc(); vq2 = V.alloc(); k1 = V.alloc(); k2 = V.alloc(); o1 = V.alloc(); o2 = V.alloc(); vk = V.alloc()
    KG = V.alloc(16, 4); X = V.alloc(5, 4); SG = V.alloc(4, 4); D = V.alloc(10, 2); TP = V.alloc(4, 4)
    a(f"v_lshlrev_b32 {v(vq)}, 4, {v(vlane)}\nv_lshlrev_b32 {v(vq2)}, 2, {v(vlane)}\nv_lshlrev_b32 {v(vk)}, 6, {v(vlane)}")
    ld = [f"s_mov_b32 {s(T2)}, {KEY_OFF + 4096*i}\nbuffer_load_dwordx4 {v(KG+4*i,4)}, {v(vk)}, {s(SWS,4)}, {s(T2)} offen sc1" for i in range(4)]
    poll(a, ld, [KG+4*i+3 for i in range(4)])
    a.stamp(7)
    a(f"v_mov_b32 {v(k1)}, {v(KG)}\nv_mov_b32 {v(k2)}, {v(KG+1)}")
    for i in range(1, 4):
        a(f"v_min_u32 {v(vt0)}, {v(k1)}, {v(KG+4*i)}\nv_max_u32 {v(k1)}, {v(k1)}, {v(KG+4*i)}\nv_max3_u32 {v(k2)}, {v(k2)}, {v(KG+4*i+1)}, {v(vt0)}")
    top2_dpp(a, k1, k2, o1, o2, vt0, DPP6)
    notop = a.label("notop")
    a(f"""
    s_nop 0
    v_readlane_b32 {s(T2)}, {v(k1)}, 63
    v_readlane_b32 {s(T3)}, {v(k2)}, 63
    s_cmp_eq_u32 {s(sWAVE)}, 5
    s_cselect_b32 {s(T4)}, {s(T2)}, {s(T3)}
    s_andn2_b32 {s(T4)}, 0xffff, {s(T4)}
    s_min_u32 {s(T4)}, {s(T4)}, 2047
    s_mul_i32 {s(T5)}, {s(T4)}, 1280
    buffer_load_dwordx4 {v(X,4)}, {v(vq)}, {s(SQ,4)}, {s(T5)} offen
    buffer_load_dword {v(X+4)}, {v(vq2)}, {s(SQ,4)}, {s(T5)} offen offset:1024
    ; stats granule: (idx>>3)*64 + 16*(1 + (idx&7)/3) ; T0 = (idx&7)%3
    s_and_b32 {s(T0)}, {s(T4)}, 7
    s_mul_i32 {s(T1)}, {s(T0)}, 43
    s_lshr_b32 {s(T1)}, {s(T1)}, 7
    s_mul_i32 {s(T5)}, {s(T1)}, 3
    s_sub_u32 {s(T0)}, {s(T0)}, {s(T5)}
    s_lshl_b32 {s(T1)}, {s(T1)}, 4
    s_lshr_b32 {s(T4)}, {s(T4)}, 3
    s_lshl_b32 {s(T4)}, {s(T4)}, 6
    s_add_u32 {s(T4)}, {s(T4)}, {s(T1)}
    s_add_u32 {s(T4)}, {s(T4)}, {KEY_OFF + 16}
    v_mov_b32 {v(vt1)}, {s(T4)}
    s_cmp_lg_u32 {s(sWAVE)}, 5
    s_cbranch_scc1 {notop}
    v_mov_b32 {v(TP)}, {s(T2)}
    v_mov_b32 {v(TP+1)}, {s(T3)}
    v_mov_b32 {v(TP+2)}, 0
    v_mov_b32 {v(TP+3)}, {s(sTAG)}
    v_mov_b32 {v(vt0)}, {TK}
    s_mov_b64 exec, 0xf
    ds_write_b64 {v(vt0)}, {v(TP,2)}
    s_cmp_ge_u32 {s(sCI)}, 8
    s_cbranch_scc1 {notop}
    s_lshl_b32 {s(T4)}, {s(sCI)}, 7
    s_add_u32 {s(T4)}, {s(T4)}, {TOP_OFF}
    buffer_store_dwordx4 {v(TP,4)}, {v(vq)}, {s(SWS,4)}, {s(T4)} offen sc1
    s_cmp_lg_u32 {s(sCI)}, 0
    s_cbranch_scc1 {notop}
    s_mov_b32 {s(T4)}, {EP_OFF}
    s_mov_b64 exec, 1
    buffer_store_dword {v(TP+3)}, {v(vq)}, {s(SWS,4)}, {s(T4)} offen
    {notop}:
    s_mov_b64 exec, -1
    """)
    poll(a, [f"buffer_load_dwordx4 {v(SG,4)}, {v(vt1)}, {s(SWS,4)}, 0 offen sc1"], [SG+3])
    a.stamp(8)
    a(f"""
    s_cmp_eq_u32 {s(T0)}, 1
    s_cselect_b64 vcc, -1, 0
    v_cndmask_b32 {v(SG)}, {v(SG)}, {v(SG+1)}, vcc
    s_cmp_eq_u32 {s(T0)}, 2
    s_cselect_b64 vcc, -1, 0
    v_cndmask_b32 {v(SG)}, {v(SG)}, {v(SG+2)}, vcc
    v_and_b32 {v(SG+1)}, 0xffff0000, {v(SG)}
    v_rcp_f32 {v(SG+1)}, {v(SG+1)}
    v_lshlrev_b32 {v(SG)}, 16, {v(SG)}
    """)
    for i in range(5):
        a.unpack(D+2*i, D+2*i+1, X+i)
    for i in range(10):
        a(f"v_sub_f32 {v(D+i)}, {v(D+i)}, {v(SG)}")
    for i in range(5):
        rnd2(a, D+2*i, D+2*i+1, X+i)
    for i in range(10):
        a(f"v_mul_f32 {v(D+i)}, {v(D+i)}, {v(SG+1)}")
    for i in range(5):
        a(f"v_cvt_pk_bf16_f32 {v(X+i)}, {v(D+2*i)}, {v(D+2*i+1)}")
    a(f"""
    s_sub_u32 {s(T2)}, {s(sWAVE)}, 5
    s_mul_i32 {s(T2)}, {s(T2)}, 1280
    v_add_u32 {v(vq)}, {s(T2)}, {v(vq)}
    v_add_u32 {v(vq2)}, {s(T2)}, {v(vq2)}
    ds_write_b128 {v(vq)}, {v(X,4)} offset:{XS}
    ds_write_b32 {v(vq2)}, {v(X+4)} offset:{XS+1024}
    {mb2}:
    s_waitcnt lgkmcnt(0)
    s_barrier
    s_barrier
    """)
    a.stamp(9)
    mb4 = a.label("mb4")
    R = KG
    a(f"""
    s_cmp_eq_u32 {s(sWAVE)}, 7
    s_cbranch_scc1 {mb4}
    v_subrev_u32 {v(vt0)}, 320, v0
    v_lshlrev_b32 {v(vt1)}, 2, {v(vt0)}
    """)
    for w in range(5):
        a(f"ds_read_b32 {v(R+w)}, {v(vt1)} offset:{RED+1024*w}")
        a(f"ds_read_b32 {v(R+8+w)}, {v(vt1)} offset:{RED+1024*w+512}")
    a(f"""
    v_and_b32 {v(vt1)}, 1, {v(vt0)}
    v_lshlrev_b32 {v(vt1)}, 7, {v(vt1)}
    v_and_b32 {v(vt0)}, 126, {v(vt0)}
    v_add_u32 {v(vt0)}, {v(vt0)}, {v(vt1)}
    s_waitcnt lgkmcnt(0)
    """)
    for w in range(1, 5):
        a(f"v_add_f32 {v(R)}, {v(R)}, {v(R+w)}\nv_add_f32 {v(R+8)}, {v(R+8)}, {v(R+8+w)}")
    g, u_, t_ = R, R+8, R+1
    rnd2(a, g, u_, t_)
    a(f"v_mov_b32 {v(t_)}, {v(g)}")
    sigmoid(a, t_)
    a(f"v_mul_f32 {v(g)}, {v(g)}, {v(t_)}")
    rnd1(a, g)
    a(f"""
    v_mul_f32 {v(g)}, {v(g)}, {v(u_)}
    v_cvt_pk_bf16_f32 {v(t_)}, {v(g)}, {v(g)}
    ds_write_b16 {v(vt0)}, {v(t_)} offset:{HS}
    s_waitcnt lgkmcnt(0)
    {mb4}:
    s_barrier
    s_branch {P3pre}
    """)
    a(f"{done}:")
    a.stamp_flush(0)
    a(f"{end}:\ns_endpgm")

    return name, 248, 102 if a.stamps else 72

def main(out):
    hdr = open("cdna_kernels/%s.s.ref" % NAME).read().split("; Override launch")[0]
    a = Asm()
    a.stamps = "--stamps" in sys.argv
    a.STAMP_OFF = 12 << 20
    a('.amdgcn_target "amdgcn-amd-amdhsa--gfx950"\n.text')
    n, vg, sg = gen(a)
    txt = hdr + f"; @launch grid=(256,1,1) block=(512,1,1) lds={LDS}\n" + a.text() + '.section .rodata,"a"\n.p2align 6\n' + kernel_desc(n, vg, sg)
    open(out, "w").write(txt)

if __name__ == "__main__":
    main(sys.argv[1])
```
